```python
import torch

def _softmax(x, axis=-1):
    return torch.softmax(x, dim=axis)
def _gelu(x):
    return torch.nn.functional.gelu(x, approximate="tanh")
def _silu(x):
    return torch.nn.functional.silu(x)
def _sigmoid(x):
    return torch.sigmoid(x)
def _layernorm(x, axis=-1, eps=1e-5):
    m = x.mean(dim=axis, keepdim=True)
    v = x.var(dim=axis, keepdim=True, unbiased=False)
    return (x - m) / torch.sqrt(v + eps)
def _scatter_add(tgt, idx, src, axis=0):
    return tgt.clone().index_add_(axis, idx, src)
def _segment_sum(src, seg, n):
    out = torch.zeros((n,) + src.shape[1:], dtype=src.dtype)
    return out.index_add_(0, seg, src)
def _pad(x, pw):
    flat = tuple(v for pair in reversed(pw) for v in pair)
    return torch.nn.functional.pad(x, flat)

kernel_name = 'parallel_sum__sliding_block__geglu_ffn__prompt'

def setup_inputs():

    _w = (lambda a: (lambda t: t.to(torch.bfloat16) if t.is_floating_point() else t)(torch.as_tensor(a)))
    def _A_setup():
        B, S, D = 1, 2048, 640
        return {
            "x": _w((lambda *s: torch.randn(*s, dtype=torch.bfloat16) * 0.05)(B, S, D)),
            "wqkv": _w((lambda *s: torch.randn(*s, dtype=torch.bfloat16) * 0.05)(D, 3 * D)),
            "wo": _w((lambda *s: torch.randn(*s, dtype=torch.bfloat16) * 0.05)(D, D)),
        }
    _A_in = _A_setup()

    def _B_setup():
        B, S, D, F = 1, 2048, 640, 1728
        return {
            "x": _w((lambda *s: torch.randn(*s, dtype=torch.bfloat16) * 0.05)(B, S, D)),
            "w_gate": _w((lambda *s: torch.randn(*s, dtype=torch.bfloat16) * 0.05)(D, F)),
            "w_up": _w((lambda *s: torch.randn(*s, dtype=torch.bfloat16) * 0.05)(D, F)),
            "w_down": _w((lambda *s: torch.randn(*s, dtype=torch.bfloat16) * 0.05)(F, D)),
        }
    _B_in = _B_setup()

    return {
        "A_x": _A_in["x"],
        "A_wqkv": _A_in["wqkv"],
        "A_wo": _A_in["wo"],
        "B_x": _B_in["x"],
        "B_w_gate": _B_in["w_gate"],
        "B_w_up": _B_in["w_up"],
        "B_w_down": _B_in["w_down"],
    }

def reference(A_x, A_wqkv, A_wo, B_x, B_w_gate, B_w_up, B_w_down):
    def _A_ref(x, wqkv, wo):
        B, S, D = x.shape
        H = 32; Dh = D // H; W = 256
        qkv = (lambda x, *d: x.permute(*d))((x @ wqkv).reshape(B, S, 3, H, Dh), 2, 0, 3, 1, 4)
        q, k, v = qkv[0], qkv[1], qkv[2]
        scores = torch.einsum("bhqd,bhkd->bhqk", q, k) * (Dh ** -0.5)
        idx = torch.arange(S)
        mask = (idx[:, None] - idx[None, :] >= 0) & (idx[:, None] - idx[None, :] < W)
        scores = torch.where(mask[None, None], scores, -1e9)
        p = _softmax(scores, axis=-1)
        o = torch.einsum("bhqk,bhkd->bhqd", p, v)
        return (lambda x, *d: x.permute(*d))(o, 0, 2, 1, 3).reshape(B, S, D) @ wo

    def _B_ref(x, w_gate, w_up, w_down):
        return (_gelu(x @ w_gate) * (x @ w_up)) @ w_down

    x = A_x
    xn = _layernorm(x, axis=-1)
    return x + _A_ref(xn, A_wqkv, A_wo) + _B_ref(xn, B_w_gate, B_w_up, B_w_down)
```

```python
class Asm:
    def __init__(s): s.l = []
    def __call__(s, t):
        for x in t.strip().split("\n"):
            if x.strip(): s.l.append("    " + x.strip() if not x.strip().endswith(":") else x.strip())
    def text(s): return "\n".join(s.l) + "\n"
def kernel_head(name):
    return f".text\n.globl {name}\n.p2align 8\n.type {name},@function\n{name}:\n"
def kernel_desc(name, vgpr, accum, sgpr=102):
    return f""".section .rodata,"a"
.p2align 6
.amdhsa_kernel {name}
  .amdhsa_next_free_vgpr {vgpr}
  .amdhsa_next_free_sgpr {sgpr}
  .amdhsa_accum_offset {accum}
  .amdhsa_group_segment_fixed_size 0
  .amdhsa_kernarg_size 80
  .amdhsa_user_sgpr_count 2
  .amdhsa_user_sgpr_kernarg_segment_ptr 1
  .amdhsa_system_sgpr_workgroup_id_x 1
.end_amdhsa_kernel
"""
```

```python
from asmlib import *
import math
QKV_OFF = 0;            QKV_T = 120*1024
H_OFF = 0x800000;       H_T = 148*1024
W2_OFF = 0x1200000;     W2_N = 74*5120
FLAG_OFF = 0x1600000
WS_SZ = 0x1800000
def f2u(x):
    import struct; return struct.unpack("<I", struct.pack("<f", x))[0]
class VQ:
    def __init__(s): s.q = []
    def push(s, tag): s.q.append(tag)
    def wait(s, tag):
        idx = [i for i, t in enumerate(s.q) if t == tag]
        if not idx: return None
        n = len(s.q) - 1 - idx[-1]
        s.q = s.q[idx[-1]+1:]
        return min(n, 63)
def stamp(a, i, prof):
    if prof: a(f"s_memtime s[90:91]\ns_waitcnt lgkmcnt(0)\ns_sub_u32 s{70+i}, s90, s92")
import os
DIAG = int(os.environ.get("DIAG", 0))
NS = 10
PD = int(os.environ.get('PD', 2))
def k1_main(a, special, prof, SC, tail=None):
    vq = VQ()
    vP, vF = 160, 162; vA = [164, 165, 166, 167, 168, 169]; vSt = 170; vR, vMR, vC0 = 171, 172, 173
    T0 = 174; AB = 192; WF = 64
    steps = ["P", "P", "F"] if special else ["P", "F", "F"]
    def dma(gs):
        if gs >= 30: return []
        st, sl = divmod(gs, 10); out = []
        P = steps[st] == "P"; stride = 3840 if P else 3456
        for half in range(2):
            srd = "s[8:11]" if P else ("s[12:15]" if half == 0 else "s[16:19]")
            pre = f"s_add_u32 m0, s36, {(gs % NS) * 16384 + half * 8192}\n"
            pre += f"s_add_u32 s37, s{30+st}, {128 * half + 64 * sl * stride}\n" if (P or half == 0) else "s_nop 0\n"
            v = vP if P else vF
            out.append(pre + f"buffer_load_dwordx4 v{v}, {srd}, s37 offen lds")
            out.append(f"buffer_load_dwordx4 v{v+1}, {srd}, s37 offen offset:1024 lds")
        return out
    stamp(a, 7, prof)
    def xd(c):
        o = []
        for rg in range(4):
            pre = f"s_add_u32 m0, s36, {c*16384 + (rg>>1)*8192}\ns_add_u32 s37, s43, {c*128}\n" if rg % 2 == 0 else ""
            o.append((pre + f"buffer_load_dwordx4 v{192+rg}, s[4:7], s37 offen" + (" offset:1024" if rg & 1 else "") + " lds", f"x{c}"))
        return o
    XA = int(os.environ.get("XA", 4))
    for c in range(XA):
        for o, tag in xd(c): a(o); vq.push(tag)
    stamp(a, 0, prof)
    S = 200
    a(f"v_mov_b32 v{S}, 0\nv_mov_b32 v{S+1}, 0\nv_mov_b32 v{S+2}, 0\nv_mov_b32 v{S+3}, 0\ns_mov_b32 s38, 0x3f803f80")
    def st_ops(c, inter=[]):
        inter = list(inter); per = (len(inter) + 3) // 4
        for s in range(4*c, 4*c+4):
            for o, tag in inter[:per]: a(o); vq.push(tag)
            inter = inter[per:]
            if c < 0: continue
            for e in range(4):
                a(f"v_dot2_f32_bf16 v{S+(e&1)}, v{4*s+e}, s38, v{S+(e&1)}\nv_dot2_f32_bf16 v{S+2+(e&1)}, v{4*s+e}, v{4*s+e}, v{S+2+(e&1)}")
    for c in range(10):
        a(f"s_waitcnt vmcnt({vq.wait(f'x{c}')})")
        if c in (4, 8):
            for q in range(4): a(f"v_add_u32 v{196+q}, 0x10000, v{196+q}")
        for q in range(4): a(f"ds_read_b128 v[{16*c+4*q}:{16*c+4*q+3}], v{196+q} offset:{(c&3)*16384}")
        j = c + XA - 10
        st_ops(c - 1, xd(c + XA) if j < 0 else ([(d, f"w{j}") for d in dma(2*j) + dma(2*j+1)] if j < 2 else []))
        a("s_waitcnt lgkmcnt(0)")
    st_ops(9)
    stamp(a, 1, prof)
    a(f"""s_nop 2
    v_add_f32 v{S}, v{S}, v{S+1}
    v_add_f32 v{S+2}, v{S+2}, v{S+3}
    v_mov_b32 v{S+1}, v{S}
    v_mov_b32 v{S+3}, v{S+2}
    s_nop 1
    v_permlane32_swap_b32 v{S}, v{S+1}
    v_permlane32_swap_b32 v{S+2}, v{S+3}
    s_nop 1
    v_add_f32 v{S}, v{S}, v{S+1}
    v_add_f32 v{S+2}, v{S+2}, v{S+3}
    v_mul_f32 v{S}, {hex(f2u(-1.0/640))}, v{S}
    v_mul_f32 v{S+2}, {hex(f2u(1.0/640))}, v{S+2}
    v_fma_f32 v{S+2}, -v{S}, v{S}, v{S+2}
    v_max_f32 v{S+2}, 0, v{S+2}
    v_add_f32 v{S+2}, {hex(f2u(1e-5))}, v{S+2}
    v_rsq_f32 v{vR}, v{S+2}
    s_mov_b32 s41, {hex(f2u(-2*math.log2(math.e)*math.sqrt(2/math.pi)))}
    v_mov_b32 v{vC0}, s41
    v_mul_f32 v{vMR}, v{S}, v{vR}
    s_mov_b32 s41, {hex(f2u(-2*math.log2(math.e)*math.sqrt(2/math.pi)*0.044715))}""")
    def ln_ops(s):
        o = []
        for e in range(4):
            t = AB + 16 + 2 * e
            o.append(f"v_lshlrev_b32 v{t}, 16, v{4*s+e}")
            o.append(f"v_and_b32 v{t+1}, 0xffff0000, v{4*s+e}")
            o.append(f"v_fma_f32 v{t}, v{t}, v{vR}, v{vMR}")
            o.append(f"v_fma_f32 v{t+1}, v{t+1}, v{vR}, v{vMR}")
            o.append(f"v_cvt_pk_bf16_f32 v{4*s+e}, v{t}, v{t+1}")
        return o
    def epi(st):
        o = []; inV = st == 1
        if steps[st] == "P":
            for t in range(4):
                for j in range(2):
                    b = AB + 16*t + 8*j if inV else T0; d = T0 + 8 + 4 * j
                    if not inV:
                        for e in range(8): o.append(f"v_accvgpr_read_b32 v{b+e}, a{16*t+8*j+e}")
                        for e in range(8): o.append(f"v_mul_f32 v{b+e}, s40, v{b+e}")
                    for e in range(4): o.append(f"v_cvt_pk_bf16_f32 v{d+e}, v{b+2*e}, v{b+2*e+1}")
                    o.append(f"s_add_u32 s42, s{33+st}, {(2*t+j)*1024}\nbuffer_store_dwordx4 v[{d}:{d+3}], v{vSt}, s[20:23], s42 offen{SC}")
        else:
            for t in range(2):
                for j in range(2):
                    d = T0 + 8 + 4 * j
                    for q in range(2):
                        src = 16 * t + 8 * j + 4 * q; g = AB + src; u = g + 32; z = T0 + 4 * q
                        if not inV:
                            for e in range(4): o.append(f"v_accvgpr_read_b32 v{g+e}, a{src+e}")
                            for e in range(4): o.append(f"v_accvgpr_read_b32 v{u+e}, a{src+32+e}")
                        for e in range(4): o.append(f"v_mul_f32 v{z+e}, v{g+e}, v{g+e}")
                        for e in range(4): o.append(f"v_fma_f32 v{z+e}, v{z+e}, s41, v{vC0}")
                        for e in range(4): o.append(f"v_mul_f32 v{z+e}, v{z+e}, v{g+e}")
                        for e in range(4): o.append(f"v_exp_f32 v{z+e}, v{z+e}\nv_mul_f32 v{g+e}, v{g+e}, v{u+e}")
                        for e in range(4): o.append(f"v_add_f32 v{z+e}, 1.0, v{z+e}")
                        for e in range(4): o.append(f"v_rcp_f32 v{z+e}, v{z+e}")
                        for e in range(4): o.append(f"v_mul_f32 v{g+e}, v{g+e}, v{z+e}")
                        for e in range(2): o.append(f"v_cvt_pk_bf16_f32 v{d+2*q+e}, v{g+2*e}, v{g+2*e+1}")
                    o.append(f"s_add_u32 s42, s{33+st}, {(2*t+j)*1024}\nbuffer_store_dwordx4 v[{d}:{d+3}], v{vSt}, s[20:23], s42 offen{SC}")
        return o
    def reads(gk):
        if gk >= 120: return []
        gs, ks = divmod(gk, 4); o = []
        for t in range(4):
            W = WF + 16 * (gk % (PD + 1)) + 4 * t
            for j in range(2):
                off = (gs % NS) * 16384 + (t >> 1) * 8192 + ks * 2048 + j * 512
                o.append(f"ds_read_b64_tr_b16 {'v' if DIAG==4 else 'a'}[{W+2*j+(144 if DIAG==4 else 0)}:{W+2*j+1+(144 if DIAG==4 else 0)}], v{vA[(t&1) + 2*(off>>16)]} offset:{off & 0xffff}")
        return o
    for o in ln_ops(0): a(o)
    a(f"s_waitcnt vmcnt({vq.wait('w0')})\ns_barrier")
    for g in range(PD):
        for o in reads(g): a(o)
    stamp(a, 2, prof)
    issued = 2; pend = []
    for st in range(3):
        fill = epi(st - 1) if st > 0 else []
        nf = len(fill); done = 0
        for k in range(40):
            gk = 40 * st + k; ss = gk // 8
            lg = 8 * min(PD - 1, 119 - gk)
            a(f"s_waitcnt lgkmcnt({lg})")
            rd = reads(gk + PD)
            ln = ln_ops(k + 1) if (st == 0 and k < 39) else []
            lsp = [0, 3, 6, 13, 20]
            for t in range(4):
                W = WF + 16 * (gk % (PD + 1)) + 4 * t
                acc = f"v[{AB+16*t}:{AB+16*t+15}]" if st == 1 else f"a[{16*t}:{16*t+15}]"
                a(f"v_mfma_f32_32x32x16_bf16 {acc}, a[{W}:{W+3}], v[{4*k}:{4*k+3}], {'0' if k == 0 else acc}")
                if t == 0 and k % 8 == 0:
                    n = vq.wait(f"w{ss+1}")
                    if n is not None: a(f"s_waitcnt vmcnt({n})")
                    if ss < 14: a("s_barrier")
                    assert not pend
                    for _ in range(2):
                        if issued <= ss + 4 and issued < 15:
                            pend += [(d, f"w{issued}") for d in dma(2 * issued) + dma(2 * issued + 1)]; issued += 1
                    rate = len(pend) // 8
                if t < 2:
                    for o in rd[4*t:4*t+4]: a(o)
                for o in ln[lsp[t]:lsp[t+1]]: a(o)
                if pend and (t == 2 or (t == 3 and rate == 2)):
                    o, tag = pend.pop(0); a(o); vq.push(tag)
                m = 8 * k + [1, 2, 5, 8][t]
                tgt = min(nf, max(0, (m - 8) * nf // 300))
                while done < tgt:
                    a(fill[done])
                    if "buffer_store" in fill[done]: vq.push("st")
                    done += 1
            if ln: a("s_nop 0")
        assert done == nf
        stamp(a, 3 + st, prof)
    a("s_nop 7\ns_nop 3")
    for o in epi(2): a(o)
    stamp(a, 6, prof)

def k1_setup(a):
    a(f"""s_cmp_ge_u32 s2, 256
    s_cbranch_scc1 K1_END
    s_memtime s[92:93]
    s_load_dwordx2 s[4:5], s[0:1], 0
    s_load_dwordx2 s[8:9], s[0:1], 8
    s_load_dwordx2 s[12:13], s[0:1], 32
    s_load_dwordx2 s[16:17], s[0:1], 40
    s_load_dwordx2 s[20:21], s[0:1], 72
    s_load_dwordx2 s[44:45], s[0:1], 48
    s_load_dwordx2 s[48:49], s[0:1], 16
    s_mov_b32 s6, {2048*1280}
    s_mov_b32 s7, 0x20000
    s_mov_b32 s10, {640*3840}
    s_mov_b32 s11, 0x20000
    s_mov_b32 s14, {640*3456}
    s_mov_b32 s15, 0x20000
    s_mov_b32 s18, {640*3456}
    s_mov_b32 s19, 0x20000
    s_mov_b32 s22, {WS_SZ}
    s_mov_b32 s23, 0x20000
    s_mov_b32 s46, {1728*1280}
    s_mov_b32 s47, 0x20000
    s_mov_b32 s50, {640*1280}
    s_mov_b32 s51, 0x20000
    v_lshrrev_b32 v200, 6, v0
    v_and_b32 v201, 63, v0
    s_and_b32 s24, s2, 7
    v_readfirstlane_b32 s25, v200
    s_lshr_b32 s26, s2, 3
    s_and_b32 s27, s24, 1
    s_lshl_b32 s27, s27, 3
    s_and_b32 s28, s26, 7
    s_add_u32 s27, s27, s28
    s_lshr_b32 s28, s24, 1
    s_lshl_b32 s28, s28, 2
    s_lshr_b32 s29, s26, 3
    s_add_u32 s28, s28, s29
    v_lshlrev_b32 v170, 4, v201""")
def k1_gemm_setup(a):
    a(f"""v_lshrrev_b32 v202, 3, v201
    v_and_b32 v203, 7, v201
    v_lshrrev_b32 v204, 1, v202
    v_xor_b32 v207, v203, v204
    v_lshlrev_b32 v207, 4, v207
    v_mul_u32_u24 v192, 1280, v202
    v_add_u32 v192, v192, v207
    v_add_u32 v193, {8*1280-1024}, v192
    v_xor_b32 v194, 64, v192
    v_add_u32 v194, {16*1280}, v194
    v_add_u32 v195, {8*1280-1024}, v194
    s_lshl_b32 s29, s27, 2
    s_add_u32 s29, s29, s25
    s_mul_i32 s43, s29, {32*1280}
    s_lshl_b32 s36, s25, 11
    v_and_b32 v204, 1, v204
    v_lshlrev_b32 v204, 2, v204
    v_xor_b32 v203, v203, v204
    v_lshlrev_b32 v203, 4, v203
    s_lshl_b32 s30, s25, 4
    v_add_u32 v202, s30, v202
    v_mul_u32_u24 v160, 3840, v202
    v_mul_u32_u24 v162, 3456, v202
    v_add_u32 v160, v160, v203
    v_add_u32 v162, v162, v203
    v_add_u32 v161, {8*3840-1024}, v160
    v_add_u32 v163, {8*3456-1024}, v162
    v_and_b32 v202, 3, v201
    v_bfe_u32 v203, v201, 2, 2
    v_bfe_u32 v204, v201, 4, 1
    v_lshrrev_b32 v205, 5, v201
    v_lshlrev_b32 v206, 10, v205
    v_lshl_add_u32 v206, v203, 7, v206
    v_lshl_add_u32 v206, v204, 5, v206
    v_lshl_add_u32 v206, v202, 3, v206
    v_lshrrev_b32 v203, 1, v203
    v_lshlrev_b32 v203, 6, v203
    v_add_u32 v164, v206, v203
    {"v_lshlrev_b32 v164, 3, v201" if DIAG == 3 else ""}
    v_xor_b32 v165, 64, v164
    v_add_u32 v166, 0x10000, v164
    v_add_u32 v167, 0x10000, v165
    v_add_u32 v168, 0x20000, v164
    v_add_u32 v169, 0x20000, v165
    v_bfe_u32 v202, v201, 1, 2
    v_lshl_or_b32 v202, v204, 2, v202
    v_xor_b32 v202, v202, v205
    v_lshlrev_b32 v202, 4, v202
    v_lshl_add_u32 v202, v204, 13, v202
    v_and_b32 v203, 15, v201
    v_lshl_add_u32 v202, v203, 7, v202
    v_add_u32 v196, s36, v202
    v_xor_b32 v197, 32, v196
    v_xor_b32 v198, 64, v196
    v_xor_b32 v199, 96, v196
    s_mul_i32 s52, s29, {QKV_T}
    s_mul_i32 s53, s29, {H_T}
    s_add_u32 s53, s53, {H_OFF}
    s_lshl_b32 s30, s28, 8
    s_lshl_b32 s33, s28, 13
    s_add_u32 s33, s33, s52
    s_cmp_lt_u32 s28, 5
    s_cselect_b32 s40, {hex(f2u(20**-0.5*math.log2(math.e)))}, 1.0
    s_lshl_b32 s31, s28, 8
    s_add_u32 s32, s31, 128
    s_lshl_b32 s34, s28, 13
    s_add_u32 s34, s34, s53
    s_add_u32 s35, s34, 4096
    s_waitcnt lgkmcnt(0)""")
def k1_repack(a, SC):
    a(f"""s_sub_u32 s29, s28, 14
    s_lshl_b32 s29, s29, 4
    s_add_u32 s29, s29, s27
    v_lshrrev_b32 v1, 3, v201
    v_and_b32 v2, 7, v201
    v_mul_u32_u24 v3, 1280, v1
    v_lshl_add_u32 v3, v2, 4, v3
    v_lshrrev_b32 v4, 2, v1
    v_mul_u32_u24 v4, {36*1280}, v4
    v_add_u32 v4, v4, v3
    v_lshrrev_b32 v5, 5, v201
    v_mul_u32_u24 v5, 20480, v5
    v_bfe_u32 v6, v201, 2, 3
    v_lshl_add_u32 v5, v6, 7, v5
    v_and_b32 v6, 3, v201
    v_lshl_add_u32 v5, v6, 3, v5
    s_mul_i32 s36, s25, 10240
    s_lshr_b32 s54, s25, 1
    s_and_b32 s55, s25, 1
    s_waitcnt lgkmcnt(0)
    RP_LOOP:
    s_cmp_ge_u32 s29, 54
    s_cbranch_scc1 RP_O
    s_lshl_b32 s30, s29, 5
    s_lshl_b32 s31, s25, 3
    s_add_u32 s30, s30, s31
    s_mul_i32 s30, s30, 1280""")
    for cb in range(10): a(f"s_add_u32 m0, s36, {cb*1024}\ns_add_u32 s37, s30, {cb*128}\nbuffer_load_dwordx4 v3, s[44:47], s37 offen lds")
    a(f"""s_branch RP_T
    RP_O:
    s_sub_u32 s30, s29, 54
    s_lshl_b32 s30, s30, 1
    s_add_u32 s30, s30, s54
    s_mul_i32 s31, s30, 52429
    s_lshr_b32 s31, s31, 18
    s_mul_i32 s32, s31, 5
    s_sub_u32 s32, s30, s32
    s_mul_i32 s31, s31, 80
    s_cmp_eq_u32 s32, 4
    s_cbranch_scc1 RP_L
    s_mul_i32 s32, s32, 20
    s_add_u32 s31, s31, s32
    s_lshl_b32 s32, s55, 3
    s_add_u32 s31, s31, s32
    v_mov_b32 v7, v3
    s_branch RP_O2
    RP_L:
    s_mul_i32 s32, s55, 20
    s_add_u32 s31, s31, s32
    s_add_u32 s31, s31, 16
    v_mov_b32 v7, v4
    RP_O2:
    s_mul_i32 s30, s31, 1280""")
    for cb in range(10): a(f"s_add_u32 m0, s36, {cb*1024}\ns_add_u32 s37, s30, {cb*128}\nbuffer_load_dwordx4 v7, s[48:51], s37 offen lds")
    a(f"""RP_T:
    s_waitcnt vmcnt(0)
    s_barrier
    s_mul_i32 s30, s25, 2560
    s_and_b32 s31, s25, 1
    s_mul_i32 s31, s31, {64-512}
    s_add_u32 s30, s30, s31
    v_add_u32 v8, s30, v5
    s_mul_i32 s30, s25, {2*W2_N}
    s_mul_i32 s31, s29, 5120
    s_add_u32 s30, s30, s31
    s_add_u32 s30, s30, {W2_OFF}""")
    a("s_cmp_eq_u32 s55, 0\ns_cbranch_scc0 RP_ODD")
    for par in range(2):
        if par: a("RP_ODD:")
        for i in range(10):
            n = 2 * par + i; off = (n >> 2) * 1024 + (n & 3) * 32 - 64 * par
            a(f"ds_read_b64_tr_b16 v[{16+4*i}:{17+4*i}], v8 offset:{off}\nds_read_b64_tr_b16 v[{18+4*i}:{19+4*i}], v8 offset:{off+10240}")
        if not par: a("s_branch RP_ST")
    a("RP_ST:\ns_waitcnt lgkmcnt(0)")
    for i in range(10):
        a(f"s_add_u32 s37, s30, {(i//5)*W2_N + (i%5)*1024}\nbuffer_store_dwordx4 v[{16+4*i}:{19+4*i}], v170, s[20:23], s37 offen{SC}")
    a("s_barrier\ns_add_u32 s29, s29, 32\ns_cmp_lt_u32 s29, 74\ns_cbranch_scc1 RP_LOOP")
def prof_out(a, n):
    a(f"s_load_dwordx2 s[20:21], s[0:1], 72\ns_lshl_b32 s60, s2, 2\ns_add_u32 s60, s60, s25\ns_lshl_b32 s60, s60, 6\ns_add_u32 s60, s60, {FLAG_OFF+0x100000}\nv_mov_b32 v1, 0\ns_waitcnt lgkmcnt(0)")
    for i in range(n): a(f"v_mov_b32 v2, s{70+i}\nbuffer_store_dword v2, v1, s[20:23], s60 offen offset:{4*i}")
def k1(name, prof=False, SC=""):
    a = Asm()
    k1_setup(a)
    a("s_cmp_ge_u32 s28, 14\ns_cbranch_scc1 K1_RP")
    if DIAG == 2: a("s_mov_b32 s69, 0\nK1_AGAIN:\nv_lshrrev_b32 v201, 4, v170\ns_barrier\ns_memtime s[92:93]")
    k1_gemm_setup(a)
    a("s_cmp_eq_u32 s28, 13\ns_cbranch_scc1 K1_SP")
    k1_main(a, False, prof, SC)
    if DIAG == 2: a("s_waitcnt vmcnt(0)\ns_add_u32 s69, s69, 1\ns_cmp_lt_u32 s69, 2\ns_cbranch_scc1 K1_AGAIN")
    a("s_branch K1_DONE\nK1_SP:")
    a(f"s_mov_b32 s31, {14*256}\ns_mov_b32 s32, {26*128}\ns_add_u32 s34, s52, {14*8192}\ns_add_u32 s35, s53, {26*4096}")
    k1_main(a, True, prof, SC)
    a("s_branch K1_DONE\nK1_RP:")
    k1_repack(a, SC)
    a("K1_DONE:")
    if prof: prof_out(a, 12)
    a("K1_END:\ns_endpgm")
    return kernel_head(name) + a.text(), kernel_desc(name, 384, 256)
```

```python
from asmlib import *
from k1 import *
KT, VT, VB = 3456, 3744, 41472
def att_stage_issue(a, vq, SC, vL16, R0):
    a(f"""s_mul_i32 s62, s61, 5
    s_lshr_b32 s62, s62, 1
    s_lshl_b32 s63, s60, 2
    s_add_u32 s63, s63, s25
    s_mul_i32 s64, s63, {QKV_T}
    s_lshl_b32 s65, s62, 10
    s_add_u32 s64, s64, s65""")
    for i in range(3):
        for kv in range(2):
            a(f"s_add_u32 s65, s64, {((4*i-8)*QKV_T + (40+40*kv)*1024) & 0xffffffff}")
            if i < 2: a(f"s_cmp_lt_u32 s63, {8-4*i}\ns_cselect_b32 s65, 0x7ff00000, s65")
            for r in range(3):
                d = R0 + 24*i + 12*kv + 4*r
                a(f"buffer_load_dwordx4 v[{d}:{d+3}], v{vL16}, s[20:23], s65 offen offset:{1024*r}{SC}"); vq.push(f"kv{i}")
def att_main(a, vq, SC, prof, vL, vL16, R0, pb=0):
    t = 246
    a(f"""s_and_b32 s66, s61, 1
    v_and_b32 v{t}, 31, v{vL}
    v_lshrrev_b32 v{t+1}, 5, v{vL}""")
    QR = 226
    a(f"v_lshlrev_b32 v{t+2}, 4, v{t}")
    for par in range(2):
        a(f"s_cmp_eq_u32 s66, {par}\ns_cbranch_scc0 AQ{par}_{pb}")
        for hd in range(2):
            gb = 2*par + 5*hd; e = gb + (gb & 1); sg = gb if gb & 1 else gb + 4
            ad = lambda g: (g >> 2) * 1024 + (g & 1) * 512 + ((g >> 1) & 1) * 8
            dlt = ad(e + 2) - ad(e)
            a(f"v_mul_u32_u24 v{t+3}, {dlt}, v{t+1}\nv_add_u32 v{t+3}, v{t+3}, v{t+2}")
            a(f"buffer_load_dwordx2 v[{QR+8*hd}:{QR+8*hd+1}], v{t+3}, s[20:23], s64 offen offset:{ad(e)}{SC}")
            a(f"buffer_load_dwordx2 v[{QR+8*hd+2}:{QR+8*hd+3}], v{t+3}, s[20:23], s64 offen offset:{ad(e)+512}{SC}")
            a(f"buffer_load_dwordx2 v[{QR+8*hd+4}:{QR+8*hd+5}], v{t+2}, s[20:23], s64 offen offset:{ad(sg)}{SC}")
        a(f"AQ{par}_{pb}:")
    for _ in range(6): vq.push("q")
    vW, vK, vV = 242, 243, 244
    a(f"""v_mul_u32_u24 v{vW}, 288, v{t+1}
    v_lshl_add_u32 v{vW}, v{t}, 3, v{vW}
    s_mul_i32 s67, s25, {KT}
    s_mul_i32 s68, s66, {2*288}
    s_add_u32 s69, s67, s68
    v_mul_u32_u24 v{vK}, 576, v{t+1}
    v_lshl_add_u32 v{vK}, v{t}, 3, v{vK}
    v_add_u32 v{vK}, s69, v{vK}
    v_lshlrev_b32 v{t+4}, 3, v{t}
    v_add_u32 v{t+4}, s69, v{t+4}
    v_add_u32 v{t+5}, s67, v{vW}
    s_mul_i32 s67, s25, {VT}
    s_add_u32 s67, s67, {VB}
    v_add_u32 v{t+6}, s67, v{vW}
    v_lshlrev_b32 v{t+7}, 2, v{vL}
    v_add_u32 v{t+7}, s67, v{t+7}
    v_mov_b32 v{t+8}, 0x3f803f80
    v_and_b32 v{t+2}, 3, v{vL}
    v_bfe_u32 v{t+3}, v{vL}, 4, 1
    v_lshl_add_u32 v{t+2}, v{t+3}, 2, v{t+2}
    v_mul_u32_u24 v{vV}, 288, v{t+2}
    v_add_u32 v{vV}, s68, v{vV}
    v_add_u32 v{vV+1}, {5*288}, v{vV}
    v_cmp_lt_u32 vcc, 4, v{t+2}
    v_mov_b32 v{t+3}, {12*288}
    v_bfe_u32 v{t+2}, v{vL}, 2, 2
    v_cndmask_b32 v{vV}, v{vV}, v{t+3}, vcc
    v_cndmask_b32 v{vV+1}, v{vV+1}, v{t+3}, vcc
    v_lshlrev_b32 v{t+2}, 3, v{t+2}
    v_lshl_add_u32 v{t+2}, v{t+1}, 5, v{t+2}
    v_add_u32 v{t+2}, s67, v{t+2}
    v_add_u32 v{vV}, v{vV}, v{t+2}
    v_add_u32 v{vV+1}, v{vV+1}, v{t+2}""")
    vK1 = t + 4; vL16 = vW
    a(f"v_lshlrev_b32 v{vW}, 4, v{vL}")
    for i in range(3): a(f"ds_write_b32 v{t+7}, v{t+8} offset:{4*i*VT + 12*288}")
    a(f"v_lshlrev_b32 v{t+2}, 2, v{t+1}\nv_sub_u32 v{t+2}, v{t}, v{t+2}\nv_mov_b32 v{t+3}, 0xf149f2ca\nv_mov_b32 v{t+9}, 0")
    for g in range(4):
        for r in range(4):
            a(f"v_cmp_gt_i32 vcc, {8*g+r}, v{t+2}")
            a(f"s_nop 1\nv_cndmask_b32 v220, v{t+3}, v{t+9}, vcc\nv_cndmask_b32 v221, v{t+9}, v{t+3}, vcc\nv_accvgpr_write_b32 a{4*g+r}, v220\nv_accvgpr_write_b32 a{16+4*g+r}, v221")
    a(f"v_cmp_gt_u32 vcc, 32, v{vL}\nv_mov_b32 v220, 0x3f80\ns_nop 0\nv_cndmask_b32 v222, v{t+9}, v{t+8}, vcc\nv_cndmask_b32 v223, v{t+9}, v220, vcc\nv_mov_b32 v224, 0\nv_mov_b32 v225, 0\ns_mov_b64 s[58:59], vcc")
    for i in range(3):
        a(f"s_waitcnt vmcnt({vq.wait(f'kv{i}')})")
        for kv in range(2):
            for r in range(3):
                d = R0 + 24*i + 12*kv + 4*r; base = 4*i*(VT if kv else KT) + 4*r*288
                a(f"ds_write_b64 v{t+5+kv}, v[{d}:{d+1}] offset:{base}\nds_write_b64 v{t+5+kv}, v[{d+2}:{d+3}] offset:{base+576}")
    a(f"s_waitcnt vmcnt({vq.wait('q')})")
    for hd in range(2):
        a(f"v_cndmask_b32 v{QR+8*hd+4}, v{t+9}, v{QR+8*hd+4}, vcc\nv_cndmask_b32 v{QR+8*hd+5}, v{t+9}, v{QR+8*hd+5}, vcc\nv_mov_b32 v{QR+8*hd+6}, 0\nv_mov_b32 v{QR+8*hd+7}, 0")
    KB = 144; PB = 168; VF = 184; O = 200; MB = 216
    for b in range(3): a(f"v_mov_b32 v{KB+8*b+6}, 0\nv_mov_b32 v{KB+8*b+7}, 0")
    a(f"v_mov_b32 v{MB+2}, 0\nv_mov_b32 v{MB+3}, 0\ns_waitcnt lgkmcnt(0)\ns_barrier")
    stamp(a, pb + 0, prof)
    for hd in range(2):
        def kread(i):
            if i > 8: return
            b = KB + 8 * (i % 3); e = 6 * hd; sg = 5 if hd else 4
            a(f"ds_read_b64 v[{b}:{b+1}], v{vK} offset:{i*KT + e*288}\nds_read_b64 v[{b+2}:{b+3}], v{vK} offset:{i*KT + e*288 + 288}\nds_read_b64 v[{b+4}:{b+5}], v{vK1} offset:{i*KT + sg*288}")
        def mx(i):
            S = 16 * i
            if i < 8:
                a(f"s_cmp_ge_u32 s63, {8-i}\ns_cbranch_scc1 AV{pb}_{hd}_{i}")
                for r in range(16): a(f"v_mov_b32 v{S+r}, 0xf149f2ca")
                a(f"AV{pb}_{hd}_{i}:")
            for r in range(0, 16, 2):
                m = t + (r >> 1) % 2
                a(f"v_max3_f32 v{m}, v{S+r}, v{S+r+1}, v{m}" if i or r > 2 else f"v_max_f32 v{m}, v{S+r}, v{S+r+1}")
        kread(0); kread(1)
        for i in range(9):
            b = KB + 8 * (i % 3); S = 16 * i
            a(f"s_waitcnt lgkmcnt({3 if i < 8 else 0})")
            c = "a[0:15]" if i == 0 else ("a[16:31]" if i == 8 else "0")
            if c != "0":
                for r in range(16): a(f"v_accvgpr_read_b32 v{S+r}, a{(0 if i == 0 else 16)+r}")
                a("s_nop 1"); c = f"v[{S}:{S+15}]"
            a(f"v_mfma_f32_32x32x16_bf16 v[{S}:{S+15}], v[{b}:{b+3}], v[{QR+8*hd}:{QR+8*hd+3}], {c}")
            a(f"v_mfma_f32_32x32x16_bf16 v[{S}:{S+15}], v[{b+4}:{b+7}], v[{QR+8*hd+4}:{QR+8*hd+7}], v[{S}:{S+15}]")
            kread(i + 2)
            if i >= 2: mx(i - 2)
        def vread(i):
            if i > 8: return
            for j in range(2):
                for jj in range(2):
                    f = VF + 8 * (i & 1) + 4 * j + 2 * jj
                    a(f"ds_read_b64_tr_b16 v[{f}:{f+1}], v{vV+hd} offset:{i*VT + (16*j+8*jj)*8}")
        vread(0); mx(7); a("s_nop 1"); mx(8)
        a(f"""v_max_f32 v{t}, v{t}, v{t+1}
        v_mov_b32 v{t+1}, v{t}
        s_nop 1
        v_permlane32_swap_b32 v{t}, v{t+1}
        s_nop 1
        v_max_f32 v{t}, v{t}, v{t+1}
        v_and_b32 v{t+1}, 0xffff0000, v{t}
        v_sub_f32 v{t}, v{t}, v{t+1}
        v_and_b32 v{t+2}, 0xffff0000, v{t}
        v_sub_f32 v{t}, v{t}, v{t+2}
        v_cvt_pk_bf16_f32 v{t+1}, -v{t+1}, -v{t+2}
        v_cvt_pk_bf16_f32 v{t+2}, -v{t}, v{t+9}
        v_cndmask_b32 v{MB}, v{t+9}, v{t+1}, s[58:59]
        v_cndmask_b32 v{MB+1}, v{t+9}, v{t+2}, s[58:59]
        s_nop 1""")
        sub = lambda i: a(f"v_mfma_f32_32x32x16_bf16 v[{16*i}:{16*i+15}], v[222:225], v[{MB}:{MB+3}], v[{16*i}:{16*i+15}]")
        sub(0); sub(1); a("s_nop 7\ns_nop 2")
        def pv(i, j):
            a(f"v_mfma_f32_32x32x16_bf16 v[{O}:{O+15}], v[{VF+8*(i&1)+4*j}:{VF+8*(i&1)+4*j+3}], v[{PB+8*(i&1)+4*j}:{PB+8*(i&1)+4*j+3}], {'0' if i == 0 and j == 0 else f'v[{O}:{O+15}]'}")
        for i in range(9):
            S = 16 * i; P = PB + 8 * (i & 1)
            for r in range(16):
                a(f"v_exp_f32 v{S+r}, v{S+r}")
                if r == 1 and i + 2 < 9: sub(i + 2)
                if r == 4 and i: a("s_waitcnt lgkmcnt(0)"); pv(i - 1, 0)
                if r == 8 and i: pv(i - 1, 1)
                if r == 9: vread(i + 1) if i else None
                if r >= 3 and r & 1: a(f"v_cvt_pk_bf16_f32 v{P+(r-3)//2}, v{S+r-3}, v{S+r-2}")
            if i == 0: vread(1)
            a(f"v_cvt_pk_bf16_f32 v{P+7}, v{S+14}, v{S+15}")
        a("s_waitcnt lgkmcnt(0)\ns_nop 0"); pv(8, 0); pv(8, 1)
        a(f"""s_nop 7
        s_nop 3
        v_mov_b32 v{t}, v{O+8}
        v_mov_b32 v{t+1}, v{O+8}
        s_lshr_b32 s67, s61, 1
        s_mul_i32 s67, s67, 5
        v_permlane32_swap_b32 v{t}, v{t+1}
        s_lshl_b32 s68, s66, 1
        s_add_u32 s68, s68, s67
        v_rcp_f32 v{t+1}, v{t+1}
        s_mul_i32 s69, s63, {H_T}
        s_add_u32 s69, s69, {H_OFF + 108*1024}""")
        for r in range(12): a(f"v_mul_f32 v{O+r}, v{O+r}, v{t+1}")
        for r in range(4): a(f"v_cvt_pk_bf16_f32 v{PB+r}, v{O+2*r}, v{O+2*r+1}")
        for r in range(2): a(f"v_cvt_pk_bf16_f32 v{QR+2*hd+r}, v{O+8+2*r}, v{O+9+2*r}")
        a(f"s_lshl_b32 s68, s68, 10\ns_add_u32 s68, s68, s69\nbuffer_store_dwordx4 v[{PB}:{PB+3}], v{vL16}, s[20:23], s68 offen offset:{1024*hd}{SC}"); vq.push("o")
        stamp(a, pb + 1 + hd, prof)
    a(f"s_lshl_b32 s67, s67, 10\ns_add_u32 s67, s67, s69\ns_lshl_b32 s68, s66, 9\ns_add_u32 s67, s67, s68\ns_add_u32 s67, s67, 4096\ns_mov_b64 exec, s[58:59]\nbuffer_store_dwordx4 v[{QR}:{QR+3}], v{vL16}, s[20:23], s67 offen{SC}\ns_mov_b64 exec, -1"); vq.push("o")

def g2_setup(a, vL):
    a(f"""v_and_b32 v80, 15, v{vL}
    v_lshrrev_b32 v81, 4, v{vL}
    v_lshlrev_b32 v82, 9, v81
    v_lshl_add_u32 v82, v80, 4, v82
    v_add_u32 v83, {H_T}, v82
    v_lshlrev_b32 v84, 4, v{vL}
    v_add_u32 v85, 4096, v84
    s_mul_i32 s62, s60, {2*H_T}
    s_lshl_b32 s63, s25, 11
    s_add_u32 s62, s62, s63
    s_add_u32 s62, s62, {H_OFF}
    s_mul_i32 s63, s61, {W2_N}
    s_mul_i32 s64, s25, 5120
    s_add_u32 s63, s63, s64
    s_add_u32 s63, s63, {W2_OFF}
    v_lshrrev_b32 v86, 2, v{vL}
    v_and_b32 v87, 3, v{vL}
    s_lshl_b32 s64, s60, 2
    s_add_u32 s64, s64, s25
    s_mul_i32 s64, s64, {16*1280}
    s_mul_i32 s65, s61, 160
    s_add_u32 s64, s64, s65
    v_mul_u32_u24 v88, 1280, v86
    v_lshl_add_u32 v88, v87, 4, v88
    v_cmp_gt_u32 vcc, 2, v87
    s_mov_b64 s[56:57], vcc""")
NSL = 7
def slot(i):
    i %= NSL
    return ("v", 108 + 36 * i) if i < 4 else ("a", 36 * (i - 4))
def g2_load(a, vq, it, SC, part="both"):
    ks = 4 * it if it < 14 else 54 + 4 * (it - 14)
    f, b = slot(it)
    if part != "tok":
        a(f"s_add_u32 s67, s63, {ks*5120}")
        for s in range(5):
            a(f"buffer_load_dwordx4 {f}[{b+16+4*s}:{b+19+4*s}], v{84 if s < 4 else 85}, s[20:23], s67 offen offset:{1024*(s&3)}{SC}"); vq.push(f"g{it}")
    if part != "w":
        a(f"s_add_u32 s66, s62, {ks*2048}")
        if it == 13: a("s_cmp_ge_u32 s25, 2\ns_cselect_b32 s66, 0x7ff00000, s66")
        for s in range(4):
            a(f"buffer_load_dwordx4 {f}[{b+4*s}:{b+4*s+3}], v{82+(s>>1)}, s[20:23], s66 offen offset:{256*(s&1)}{SC}"); vq.push(f"g{it}")
def g2_main(a, vq, SC, prof, pre, pb=0, owait=None):
    for i in range(3):
        if i == 2: a("s_mov_b64 exec, s[56:57]")
        a(f"buffer_load_dwordx4 v[{96+4*i}:{99+4*i}], v88, s[4:7], s64 offen offset:{64*i}"); vq.push("xr")
    a("s_mov_b64 exec, -1")
    nxt = pre
    D = NSL - 1
    while nxt < D: g2_load(a, vq, nxt, SC); nxt += 1
    for it in range(19):
        if nxt < 19:
            if nxt == 14 and owait: owait()
            g2_load(a, vq, nxt, SC); nxt += 1
        a(f"s_waitcnt vmcnt({vq.wait(f'g{it}')})")
        f, b = slot(it)
        for s4 in range(4):
            for s in range(5):
                A = 20 * s4 + 4 * s
                a(f"v_mfma_f32_16x16x32_bf16 v[{A}:{A+3}], {f}[{b+16+4*s}:{b+19+4*s}], {f}[{b+4*s4}:{b+4*s4+3}], {'0' if it == 0 else f'v[{A}:{A+3}]'}")
    stamp(a, pb, prof)
    a(f"s_mul_i32 s66, s25, 20480\nv_add_u32 v84, s66, v84\ns_mul_i32 s66, s25, 5120\nv_lshrrev_b32 v80, 1, v87\nv_lshlrev_b32 v80, 10, v80\nv_and_b32 v81, 1, v87\nv_lshl_add_u32 v80, v81, 9, v80\nv_lshl_add_u32 v80, v86, 4, v80\nv_add_u32 v80, s66, v80\nv_add_u32 v81, 40960, v80\ns_barrier")
    for i in range(20): a(f"ds_write_b128 v84, v[{4*i}:{4*i+3}] offset:{1024*i}")
    a("s_waitcnt lgkmcnt(0)\ns_barrier")
    for i in range(3):
        for w in range(4):
            for q in range(2):
                d = 108 + 32 * i + 8 * w + 4 * q
                a(f"ds_read_b128 v[{d}:{d+3}], v{80+(w>>1)} offset:{20480*(w&1) + 2048*i + 256*q}")
    for i in range(3):
        a(f"s_waitcnt lgkmcnt({min(15, 16-8*i)})" if i else "s_waitcnt lgkmcnt(15)\ns_waitcnt vmcnt(0)")
        d = 108 + 32 * i
        for e in range(8): a(f"v_add_f32 v{d+e}, v{d+e}, v{d+8+e}\nv_add_f32 v{d+16+e}, v{d+16+e}, v{d+24+e}")
        for e in range(4): a(f"v_lshlrev_b32 v{d+8+2*e}, 16, v{96+4*i+e}\nv_and_b32 v{d+9+2*e}, 0xffff0000, v{96+4*i+e}")
        for e in range(8): a(f"v_add_f32 v{d+e}, v{d+e}, v{d+16+e}")
        for e in range(8): a(f"v_add_f32 v{d+e}, v{d+e}, v{d+8+e}")
        for e in range(4): a(f"v_cvt_pk_bf16_f32 v{d+16+e}, v{d+2*e}, v{d+2*e+1}")
        if i == 2: a("s_mov_b64 exec, s[56:57]")
        a(f"buffer_store_dwordx4 v[{d+16}:{d+19}], v88, s[8:11], s64 offen offset:{64*i}")
    a("s_mov_b64 exec, -1")
    stamp(a, pb + 1, prof)
def common(a, end):
    a(f"""s_cmp_ge_u32 s2, 256
    s_cbranch_scc1 {end}
    s_memtime s[92:93]
    s_load_dwordx2 s[4:5], s[0:1], 0
    s_load_dwordx2 s[8:9], s[0:1], 56
    s_load_dwordx2 s[20:21], s[0:1], 72
    s_mov_b32 s6, {2048*1280}
    s_mov_b32 s7, 0x20000
    s_mov_b32 s10, {2048*1280}
    s_mov_b32 s11, 0x20000
    s_mov_b32 s22, {WS_SZ}
    s_mov_b32 s23, 0x20000
    v_lshrrev_b32 v1, 6, v0
    s_and_b32 s24, s2, 7
    s_lshr_b32 s26, s2, 3
    v_readfirstlane_b32 s25, v1""")
def pout(a, n, kn):
    b = Asm(); prof_out(b, n); a(b.text().replace(str(FLAG_OFF + 0x100000), str(FLAG_OFF + 0x100000 + kn * 0x10000)))
def parts(prof):
    a = Asm(); vq = VQ(); common(a, "K2_END")
    a("v_and_b32 v160, 63, v0\nv_lshlrev_b32 v161, 4, v160\ns_lshr_b32 s60, s26, 1\ns_and_b32 s61, s26, 1\ns_lshl_b32 s24, s24, 1\ns_add_u32 s61, s61, s24\ns_waitcnt lgkmcnt(0)")
    att_stage_issue(a, vq, "", 161, 0)
    att_main(a, vq, "", prof, 160, 245, 0)
    if prof: pout(a, 3, 1)
    a("K2_END:\ns_endpgm")
    b = Asm(); vq = VQ(); common(b, "K3_END")
    b("v_and_b32 v95, 63, v0\ns_lshl_b32 s60, s24, 2\ns_and_b32 s61, s26, 3\ns_add_u32 s60, s60, s61\ns_lshr_b32 s61, s26, 2")
    g2_setup(b, 95); b("s_waitcnt lgkmcnt(0)")
    g2_main(b, vq, "", prof, 0)
    if prof: pout(b, 2, 2)
    b("K3_END:\ns_endpgm")
    return [("k2_kernel", 86528, kernel_head("k2_kernel") + a.text(), kernel_desc("k2_kernel", 288, 256)),
            ("k3_kernel", 83968, kernel_head("k3_kernel") + b.text(), kernel_desc("k3_kernel", 368, 256))]
```

```python
import sys
from asmlib import *
import k1
HDR = open("parallel_sum__sliding_block__geglu_ffn__prompt.s.ref").read().split("; Override")[0]
def build(parts):
    s = HDR
    for name, lds, _, _ in parts: s += f"; @launch kernel={name} grid=(256,1,1) block=(256,1,1) lds={lds}\n"
    s += '.amdgcn_target "amdgcn-amd-amdhsa--gfx950"\n'
    for _, _, c, _ in parts: s += c
    for _, _, _, d in parts: s += d
    return s
if __name__ == "__main__":
    prof = "prof" in sys.argv
    parts = [("k1_kernel", 163840, *k1.k1("k1_kernel", prof))]
    try:
        import k2
        parts += k2.parts(prof)
    except ImportError: pass
    open(sys.argv[1], "w").write(build(parts))
```

```python
from asmlib import *
import math
QKV_OFF = 0;            QKV_T = 120*1024
H_OFF = 0x800000;       H_T = 148*1024
W2_OFF = 0x1200000;     W2_N = 74*5120
FLAG_OFF = 0x1600000
WS_SZ = 0x1800000
def f2u(x):
    import struct; return struct.unpack("<I", struct.pack("<f", x))[0]
class VQ:
    def __init__(s): s.q = []
    def push(s, tag): s.q.append(tag)
    def count(s, tag): return min(63, len(s.q) - 1 - max(i for i, t in enumerate(s.q) if t == tag)) if tag in s.q else 63
    def peek(s, tag): return tag in s.q
    def wait(s, tag):
        idx = [i for i, t in enumerate(s.q) if t == tag]
        if not idx: return None
        n = len(s.q) - 1 - idx[-1]
        s.q = s.q[idx[-1]+1:]
        return min(n, 63)
def stamp(a, i, prof):
    if prof: a(f"s_memtime s[90:91]\ns_waitcnt lgkmcnt(0)\ns_sub_u32 s{70+i}, s90, s92")
import os
DIAG = int(os.environ.get("DIAG", 0))
NS = 10
PD = int(os.environ.get('PD', 2))
def k1_main(a, special, prof, SC, H=None):
    vq = VQ()
    vP, vF = 160, 162; vA = [164, 165, 166, 167, 168, 169]; vSt = 170; vR, vMR, vC0 = 171, 172, 173
    T0 = 174; AB = 192; WF = 64
    steps = ["P", "P", "F"] if special else ["P", "F", "F"]
    def dma(gs):
        if gs >= 30: return []
        st, sl = divmod(gs, 10); out = []
        P = steps[st] == "P"; stride = 3840 if P else 3456
        for half in range(2):
            srd = "s[8:11]" if P else ("s[12:15]" if half == 0 else "s[16:19]")
            pre = f"s_add_u32 m0, s36, {(gs % NS) * 16384 + half * 8192}\n"
            pre += f"s_add_u32 s37, s{30+st}, {128 * half + 64 * sl * stride}\n" if (P or half == 0) else "s_nop 0\n"
            v = vP if P else vF
            out.append(pre + f"buffer_load_dwordx4 v{v}, {srd}, s37 offen lds")
            out.append(f"buffer_load_dwordx4 v{v+1}, {srd}, s37 offen offset:1024 lds")
        return out
    def xd(c):
        o = []
        for rg in range(4):
            pre = f"s_add_u32 m0, s36, {c*16384 + (rg>>1)*8192}\ns_add_u32 s37, s43, {c*128}\n" if rg % 2 == 0 else ""
            o.append((pre + f"buffer_load_dwordx4 v{192+rg}, s[4:7], s37 offen" + (" offset:1024" if rg & 1 else "") + " lds", f"x{c}"))
        return o
    XA = int(os.environ.get("XA", 4))
    for c in range(XA):
        for o, tag in xd(c): a(o); vq.push(tag)
    S = 200
    a(f"v_mov_b32 v{S}, 0\nv_mov_b32 v{S+1}, 0\nv_mov_b32 v{S+2}, 0\nv_mov_b32 v{S+3}, 0\ns_mov_b32 s38, 0x3f803f80")
    def st_ops(c, inter=[]):
        inter = list(inter); per = (len(inter) + 3) // 4
        for s in range(4*c, 4*c+4):
            for o, tag in inter[:per]: a(o); vq.push(tag)
            inter = inter[per:]
            if c < 0: continue
            for e in range(4):
                a(f"v_dot2_f32_bf16 v{S+(e&1)}, v{4*s+e}, s38, v{S+(e&1)}\nv_dot2_f32_bf16 v{S+2+(e&1)}, v{4*s+e}, v{4*s+e}, v{S+2+(e&1)}")
    for c in range(10):
        a(f"s_waitcnt vmcnt({vq.wait(f'x{c}')})")
        if c in (4, 8):
            for q in range(4): a(f"v_add_u32 v{196+q}, 0x10000, v{196+q}")
        for q in range(4): a(f"ds_read_b128 v[{16*c+4*q}:{16*c+4*q+3}], v{196+q} offset:{(c&3)*16384}")
        j = c + XA - 10
        st_ops(c - 1, xd(c + XA) if j < 0 else ([(d, f"w{j}") for d in dma(2*j) + dma(2*j+1)] if j < 2 else []))
        a("s_waitcnt lgkmcnt(0)")
    st_ops(9)
    a(f"""s_nop 2
    v_add_f32 v{S}, v{S}, v{S+1}
    v_add_f32 v{S+2}, v{S+2}, v{S+3}
    v_mov_b32 v{S+1}, v{S}
    v_mov_b32 v{S+3}, v{S+2}
    s_nop 1
    v_permlane32_swap_b32 v{S}, v{S+1}
    v_permlane32_swap_b32 v{S+2}, v{S+3}
    s_nop 1
    v_add_f32 v{S}, v{S}, v{S+1}
    v_add_f32 v{S+2}, v{S+2}, v{S+3}
    v_mul_f32 v{S}, {hex(f2u(-1.0/640))}, v{S}
    v_mul_f32 v{S+2}, {hex(f2u(1.0/640))}, v{S+2}
    v_fma_f32 v{S+2}, -v{S}, v{S}, v{S+2}
    v_max_f32 v{S+2}, 0, v{S+2}
    v_add_f32 v{S+2}, {hex(f2u(1e-5))}, v{S+2}
    v_rsq_f32 v{vR}, v{S+2}
    s_mov_b32 s41, {hex(f2u(-2*math.log2(math.e)*math.sqrt(2/math.pi)))}
    v_mov_b32 v{vC0}, s41
    v_mul_f32 v{vMR}, v{S}, v{vR}
    s_mov_b32 s41, {hex(f2u(-2*math.log2(math.e)*math.sqrt(2/math.pi)*0.044715))}""")
    def ln_ops(s):
        o = []
        for e in range(4):
            t = AB + 16 + 2 * e
            o.append(f"v_lshlrev_b32 v{t}, 16, v{4*s+e}")
            o.append(f"v_and_b32 v{t+1}, 0xffff0000, v{4*s+e}")
            o.append(f"v_fma_f32 v{t}, v{t}, v{vR}, v{vMR}")
            o.append(f"v_fma_f32 v{t+1}, v{t+1}, v{vR}, v{vMR}")
            o.append(f"v_cvt_pk_bf16_f32 v{4*s+e}, v{t}, v{t+1}")
        return o
    def epi(st):
        o = []; inV = st == 1
        if steps[st] == "P":
            for t in range(4):
                for j in range(2):
                    b = AB + 16*t + 8*j if inV else T0; d = T0 + 8 + 4 * j
                    if not inV:
                        for e in range(8): o.append(f"v_accvgpr_read_b32 v{b+e}, a{16*t+8*j+e}")
                        for e in range(8): o.append(f"v_mul_f32 v{b+e}, s40, v{b+e}")
                    for e in range(4): o.append(f"v_cvt_pk_bf16_f32 v{d+e}, v{b+2*e}, v{b+2*e+1}")
                    o.append(f"s_add_u32 s42, s{33+st}, {(2*t+j)*1024}\nbuffer_store_dwordx4 v[{d}:{d+3}], v{vSt}, s[20:23], s42 offen{SC}")
        else:
            for t in range(2):
                for j in range(2):
                    d = T0 + 8 + 4 * j
                    for q in range(2):
                        src = 16 * t + 8 * j + 4 * q; g = AB + src; u = g + 32; z = T0 + 4 * q
                        if not inV:
                            for e in range(4): o.append(f"v_accvgpr_read_b32 v{g+e}, a{src+e}")
                            for e in range(4): o.append(f"v_accvgpr_read_b32 v{u+e}, a{src+32+e}")
                        for e in range(4): o.append(f"v_mul_f32 v{z+e}, v{g+e}, v{g+e}")
                        for e in range(4): o.append(f"v_fma_f32 v{z+e}, v{z+e}, s41, v{vC0}")
                        for e in range(4): o.append(f"v_mul_f32 v{z+e}, v{z+e}, v{g+e}")
                        for e in range(4): o.append(f"v_exp_f32 v{z+e}, v{z+e}\nv_mul_f32 v{g+e}, v{g+e}, v{u+e}")
                        for e in range(4): o.append(f"v_add_f32 v{z+e}, 1.0, v{z+e}")
                        for e in range(4): o.append(f"v_rcp_f32 v{z+e}, v{z+e}")
                        for e in range(4): o.append(f"v_mul_f32 v{g+e}, v{g+e}, v{z+e}")
                        for e in range(2): o.append(f"v_cvt_pk_bf16_f32 v{d+2*q+e}, v{g+2*e}, v{g+2*e+1}")
                    o.append(f"s_add_u32 s42, s{33+st}, {(2*t+j)*1024}\nbuffer_store_dwordx4 v[{d}:{d+3}], v{vSt}, s[20:23], s42 offen{SC}")
        return o
    def reads(gk):
        if gk >= 120: return []
        gs, ks = divmod(gk, 4); o = []
        for t in range(4):
            W = WF + 16 * (gk % (PD + 1)) + 4 * t
            for j in range(2):
                off = (gs % NS) * 16384 + (t >> 1) * 8192 + ks * 2048 + j * 512
                o.append(f"ds_read_b64_tr_b16 {'v' if DIAG==4 else 'a'}[{W+2*j+(144 if DIAG==4 else 0)}:{W+2*j+1+(144 if DIAG==4 else 0)}], v{vA[(t&1) + 2*(off>>16)]} offset:{off & 0xffff}")
        return o
    for o in ln_ops(0): a(o)
    a(f"s_waitcnt vmcnt({vq.wait('w0')})\ns_barrier")
    for g in range(PD):
        for o in reads(g): a(o)
    stamp(a, 0, prof)
    issued = 2; pend = []
    if H: H.start(a)
    for st in range(3):
        fill = epi(st - 1) if st > 0 else []
        nf = len(fill); done = 0
        for k in range(40):
            gk = 40 * st + k; ss = gk // 8
            lg = 8 * min(PD - 1, 119 - gk)
            a(f"s_waitcnt lgkmcnt({lg})")
            rd = reads(gk + PD)
            ln = ln_ops(k + 1) if (st == 0 and k < 39) else []
            lsp = [0, 3, 6, 13, 20]
            for t in range(4):
                W = WF + 16 * (gk % (PD + 1)) + 4 * t
                acc = f"v[{AB+16*t}:{AB+16*t+15}]" if st == 1 else f"a[{16*t}:{16*t+15}]"
                a(f"v_mfma_f32_32x32x16_bf16 {acc}, a[{W}:{W+3}], v[{4*k}:{4*k+3}], {'0' if k == 0 else acc}")
                if t == 0 and k % 8 == 0:
                    fl = H and ss == (14 if special else 10)
                    n = vq.wait("st") if fl else None
                    n = vq.wait(f"w{ss+1}") if vq.peek(f"w{ss+1}") else n
                    if n is not None: a(f"s_waitcnt vmcnt({n})")
                    if H and ss == 10: H.w2chk(a, vq)
                    if ss < 14 or fl: a("s_barrier")
                    assert not pend or ss > 11
                    if fl: H.flag(a, vq)
                    if H and ss == 14: H.pre(a, vq)
                    if H and ss == 8: H.w2a(a, vq)
                    if H and ss == 11: pend = H.w2b(a, vq)
                    for _ in range(2):
                        if issued <= ss + 4 and issued < 15:
                            pend += [(d, f"w{issued}") for d in dma(2 * issued) + dma(2 * issued + 1)]; issued += 1
                    rate = len(pend) // 8 if ss < 11 else 1
                if t < 2:
                    for o in rd[4*t:4*t+4]: a(o)
                for o in ln[lsp[t]:lsp[t+1]]: a(o)
                if pend and (t == 2 or (t == 3 and rate == 2)):
                    o, tag = pend.pop(0); a(o); vq.push(tag)
                m = 8 * k + [1, 2, 5, 8][t]
                tgt = min(nf, max(0, (m - 8) * nf // (300 if steps[st-1] == 'F' else 170)))
                while done < tgt:
                    a(fill[done])
                    if "buffer_store" in fill[done]: vq.push("st")
                    done += 1
            if ln: a("s_nop 0")
        assert done == nf
        stamp(a, [1, 10, 2][st], prof)
    if H: H.post(a, vq)
    a("s_nop 7\ns_nop 3")
    for o in epi(2):
        a(o)
        if "buffer_store" in o: vq.push("st")
    stamp(a, 3, prof)
    return vq

def k1_setup(a):
    a(f"""s_cmp_ge_u32 s2, 256
    s_cbranch_scc1 K1_END
    s_memtime s[92:93]
    s_load_dwordx2 s[4:5], s[0:1], 0
    s_load_dwordx2 s[8:9], s[0:1], 8
    s_load_dwordx2 s[12:13], s[0:1], 32
    s_load_dwordx2 s[16:17], s[0:1], 40
    s_load_dwordx2 s[20:21], s[0:1], 72
    s_load_dwordx2 s[44:45], s[0:1], 48
    s_load_dwordx2 s[48:49], s[0:1], 16
    s_mov_b32 s6, {2048*1280}
    s_mov_b32 s7, 0x20000
    s_mov_b32 s10, {640*3840}
    s_mov_b32 s11, 0x20000
    s_mov_b32 s14, {640*3456}
    s_mov_b32 s15, 0x20000
    s_mov_b32 s18, {640*3456}
    s_mov_b32 s19, 0x20000
    s_mov_b32 s22, {WS_SZ}
    s_mov_b32 s23, 0x20000
    s_mov_b32 s46, {1728*1280}
    s_mov_b32 s47, 0x20000
    s_mov_b32 s50, {640*1280}
    s_mov_b32 s51, 0x20000
    v_lshrrev_b32 v200, 6, v0
    v_and_b32 v201, 63, v0
    s_and_b32 s24, s2, 7
    v_readfirstlane_b32 s25, v200
    s_lshr_b32 s26, s2, 3
    s_and_b32 s27, s24, 3
    s_lshl_b32 s27, s27, 2
    s_and_b32 s28, s26, 3
    s_add_u32 s27, s27, s28
    s_lshr_b32 s28, s24, 2
    s_lshl_b32 s28, s28, 3
    s_lshr_b32 s29, s26, 2
    s_add_u32 s28, s28, s29
    v_lshlrev_b32 v170, 4, v201""")
def k1_gemm_setup(a):
    a(f"""v_lshrrev_b32 v202, 3, v201
    v_and_b32 v203, 7, v201
    v_lshrrev_b32 v204, 1, v202
    v_xor_b32 v207, v203, v204
    v_lshlrev_b32 v207, 4, v207
    v_mul_u32_u24 v192, 1280, v202
    v_add_u32 v192, v192, v207
    v_add_u32 v193, {8*1280-1024}, v192
    v_xor_b32 v194, 64, v192
    v_add_u32 v194, {16*1280}, v194
    v_add_u32 v195, {8*1280-1024}, v194
    s_lshl_b32 s29, s27, 2
    s_add_u32 s29, s29, s25
    s_mul_i32 s43, s29, {32*1280}
    s_lshl_b32 s36, s25, 11
    v_and_b32 v204, 1, v204
    v_lshlrev_b32 v204, 2, v204
    v_xor_b32 v203, v203, v204
    v_lshlrev_b32 v203, 4, v203
    s_lshl_b32 s30, s25, 4
    v_add_u32 v202, s30, v202
    v_mul_u32_u24 v160, 3840, v202
    v_mul_u32_u24 v162, 3456, v202
    v_add_u32 v160, v160, v203
    v_add_u32 v162, v162, v203
    v_add_u32 v161, {8*3840-1024}, v160
    v_add_u32 v163, {8*3456-1024}, v162
    v_and_b32 v202, 3, v201
    v_bfe_u32 v203, v201, 2, 2
    v_bfe_u32 v204, v201, 4, 1
    v_lshrrev_b32 v205, 5, v201
    v_lshlrev_b32 v206, 10, v205
    v_lshl_add_u32 v206, v203, 7, v206
    v_lshl_add_u32 v206, v204, 5, v206
    v_lshl_add_u32 v206, v202, 3, v206
    v_lshrrev_b32 v203, 1, v203
    v_lshlrev_b32 v203, 6, v203
    v_add_u32 v164, v206, v203
    {"v_lshlrev_b32 v164, 3, v201" if DIAG == 3 else ""}
    v_xor_b32 v165, 64, v164
    v_add_u32 v166, 0x10000, v164
    v_add_u32 v167, 0x10000, v165
    v_add_u32 v168, 0x20000, v164
    v_add_u32 v169, 0x20000, v165
    v_bfe_u32 v202, v201, 1, 2
    v_lshl_or_b32 v202, v204, 2, v202
    v_xor_b32 v202, v202, v205
    v_lshlrev_b32 v202, 4, v202
    v_lshl_add_u32 v202, v204, 13, v202
    v_and_b32 v203, 15, v201
    v_lshl_add_u32 v202, v203, 7, v202
    v_add_u32 v196, s36, v202
    v_xor_b32 v197, 32, v196
    v_xor_b32 v198, 64, v196
    v_xor_b32 v199, 96, v196
    s_mul_i32 s52, s29, {QKV_T}
    s_mul_i32 s53, s29, {H_T}
    s_add_u32 s53, s53, {H_OFF}
    s_lshl_b32 s30, s28, 8
    s_lshl_b32 s33, s28, 13
    s_add_u32 s33, s33, s52
    s_cmp_lt_u32 s28, 5
    s_cselect_b32 s40, {hex(f2u(20**-0.5*math.log2(math.e)))}, 1.0
    s_lshl_b32 s31, s28, 8
    s_add_u32 s32, s31, 128
    s_lshl_b32 s34, s28, 13
    s_add_u32 s34, s34, s53
    s_add_u32 s35, s34, 4096
    s_waitcnt lgkmcnt(0)""")
def k1_repack(a, SC):
    a(f"""s_sub_u32 s29, s28, 14
    s_lshl_b32 s29, s29, 4
    s_add_u32 s29, s29, s27
    v_lshrrev_b32 v1, 3, v201
    v_and_b32 v2, 7, v201
    v_mul_u32_u24 v3, 1280, v1
    v_lshl_add_u32 v3, v2, 4, v3
    v_lshrrev_b32 v4, 2, v1
    v_mul_u32_u24 v4, {36*1280}, v4
    v_add_u32 v4, v4, v3
    v_lshrrev_b32 v5, 5, v201
    v_mul_u32_u24 v5, 20480, v5
    v_bfe_u32 v6, v201, 2, 3
    v_lshl_add_u32 v5, v6, 7, v5
    v_and_b32 v6, 3, v201
    v_lshl_add_u32 v5, v6, 3, v5
    s_mul_i32 s36, s25, 10240
    s_lshr_b32 s54, s25, 1
    s_and_b32 s55, s25, 1
    s_waitcnt lgkmcnt(0)
    RP_LOOP:
    s_cmp_ge_u32 s29, 54
    s_cbranch_scc1 RP_O
    s_lshl_b32 s30, s29, 5
    s_lshl_b32 s31, s25, 3
    s_add_u32 s30, s30, s31
    s_mul_i32 s30, s30, 1280""")
    for cb in range(10): a(f"s_add_u32 m0, s36, {cb*1024}\ns_add_u32 s37, s30, {cb*128}\nbuffer_load_dwordx4 v3, s[44:47], s37 offen lds")
    a(f"""s_branch RP_T
    RP_O:
    s_sub_u32 s30, s29, 54
    s_lshl_b32 s30, s30, 1
    s_add_u32 s30, s30, s54
    s_mul_i32 s31, s30, 52429
    s_lshr_b32 s31, s31, 18
    s_mul_i32 s32, s31, 5
    s_sub_u32 s32, s30, s32
    s_mul_i32 s31, s31, 80
    s_cmp_eq_u32 s32, 4
    s_cbranch_scc1 RP_L
    s_mul_i32 s32, s32, 20
    s_add_u32 s31, s31, s32
    s_lshl_b32 s32, s55, 3
    s_add_u32 s31, s31, s32
    v_mov_b32 v7, v3
    s_branch RP_O2
    RP_L:
    s_mul_i32 s32, s55, 20
    s_add_u32 s31, s31, s32
    s_add_u32 s31, s31, 16
    v_mov_b32 v7, v4
    RP_O2:
    s_mul_i32 s30, s31, 1280""")
    for cb in range(10): a(f"s_add_u32 m0, s36, {cb*1024}\ns_add_u32 s37, s30, {cb*128}\nbuffer_load_dwordx4 v7, s[48:51], s37 offen lds")
    a(f"""RP_T:
    s_waitcnt vmcnt(0)
    s_barrier
    s_mul_i32 s30, s25, 2560
    s_and_b32 s31, s25, 1
    s_mul_i32 s31, s31, {64-512}
    s_add_u32 s30, s30, s31
    v_add_u32 v8, s30, v5
    s_mul_i32 s30, s25, {2*W2_N}
    s_mul_i32 s31, s29, 5120
    s_add_u32 s30, s30, s31
    s_add_u32 s30, s30, {W2_OFF}""")
    a("s_cmp_eq_u32 s55, 0\ns_cbranch_scc0 RP_ODD")
    for par in range(2):
        if par: a("RP_ODD:")
        for i in range(10):
            n = 2 * par + i; off = (n >> 2) * 1024 + (n & 3) * 32 - 64 * par
            a(f"ds_read_b64_tr_b16 v[{16+4*i}:{17+4*i}], v8 offset:{off}\nds_read_b64_tr_b16 v[{18+4*i}:{19+4*i}], v8 offset:{off+10240}")
        if not par: a("s_branch RP_ST")
    a("RP_ST:\ns_waitcnt lgkmcnt(0)")
    for i in range(10):
        a(f"s_add_u32 s37, s30, {(i//5)*W2_N + (i%5)*1024}\nbuffer_store_dwordx4 v[{16+4*i}:{19+4*i}], v170, s[20:23], s37 offen{SC}")
    a("s_barrier\ns_add_u32 s29, s29, 32\ns_cmp_lt_u32 s29, 74\ns_cbranch_scc1 RP_LOOP")
def prof_out(a, n):
    a(f"s_load_dwordx2 s[20:21], s[0:1], 72\ns_lshl_b32 s60, s2, 2\ns_add_u32 s60, s60, s25\ns_lshl_b32 s60, s60, 6\ns_add_u32 s60, s60, {FLAG_OFF+0x100000}\nv_mov_b32 v1, 0\ns_waitcnt lgkmcnt(0)")
    for i in range(n): a(f"v_mov_b32 v2, s{70+i}\nbuffer_store_dword v2, v1, s[20:23], s60 offen offset:{4*i}")
def k1(name, prof=False, SC=""):
    a = Asm()
    k1_setup(a)
    a("s_cmp_ge_u32 s28, 14\ns_cbranch_scc1 K1_RP")
    if DIAG == 2: a("s_mov_b32 s69, 0\nK1_AGAIN:\nv_lshrrev_b32 v201, 4, v170\ns_barrier\ns_memtime s[92:93]")
    k1_gemm_setup(a)
    a("s_cmp_eq_u32 s28, 13\ns_cbranch_scc1 K1_SP")
    k1_main(a, False, prof, SC)
    if DIAG == 2: a("s_waitcnt vmcnt(0)\ns_add_u32 s69, s69, 1\ns_cmp_lt_u32 s69, 2\ns_cbranch_scc1 K1_AGAIN")
    a("s_branch K1_DONE\nK1_SP:")
    a(f"s_mov_b32 s31, {14*256}\ns_mov_b32 s32, {26*128}\ns_add_u32 s34, s52, {14*8192}\ns_add_u32 s35, s53, {26*4096}")
    k1_main(a, True, prof, SC)
    a("s_branch K1_DONE\nK1_RP:")
    k1_repack(a, SC)
    a("K1_DONE:")
    if prof: prof_out(a, 12)
    a("K1_END:\ns_endpgm")
    return kernel_head(name) + a.text(), kernel_desc(name, 384, 256)
```

```python
from asmlib import *
from k1 import *
import k1
KT, VT, VB = 3456, 3744, 41472
SC = " sc1"
SLP = int(os.environ.get("SLP", 4)); NOPF = int(os.environ.get("NOPF", 1)); STS = "" if os.environ.get("PLAINST") else SC
MSK = [12, 14, 16, 18] + list(range(28, 52, 2))
uid = [0]
def poll_issue(a, vq, vdst, vaddr, tag):
    a(f"buffer_load_dword v{vdst}, v{vaddr}, s[20:23], 0 offen sc1"); vq.push(tag)
def poll_check(a, vq, vdst, vaddr, vlim, need, tag):
    uid[0] += 1; u = uid[0]
    a(f"""s_cmp_lg_u32 s25, 0
    s_cbranch_scc1 PD{u}
    s_waitcnt vmcnt({vq.count(tag)})
    s_mov_b32 s88, 0
    s_add_u32 s83, s98, {need}
    PL{u}:
    v_subrev_u32 v{vdst}, s83, v{vdst}
    v_cmp_lt_u32 vcc, v{vlim}, v{vdst}
    s_cbranch_vccz PD{u}
    s_add_u32 s88, s88, 1
    s_cmp_gt_u32 s88, 0x40000
    s_cbranch_scc1 PD{u}
    s_sleep {SLP}
    buffer_load_dword v{vdst}, v{vaddr}, s[20:23], 0 offen sc1
    s_waitcnt vmcnt(0)
    s_branch PL{u}
    PD{u}:""")
def flag(a, vq, val, v, w2=False):
    uid[0] += 1; u = uid[0]
    a(f"s_cmp_lg_u32 s25, 0\ns_cbranch_scc1 FL{u}\ns_add_u32 s83, s98, {val}\nv_mov_b32 v{v}, s83")
    if w2: a(f"v_lshlrev_b32 v{v+1}, 8, v170\ns_mov_b64 exec, 0xff\nbuffer_store_dword v{v}, v{v+1}, s[20:23], s82 offen sc1")
    else: a(f"v_mov_b32 v{v+1}, 0\ns_mov_b64 exec, 1\nbuffer_store_dword v{v}, v{v+1}, s[20:23], s89 offen sc1")
    a(f"s_mov_b64 exec, -1\nFL{u}:")
def nonce(a):
    uid[0] += 1; u = uid[0]
    a(f"s_cmp_lg_u32 s25, 0\ns_cbranch_scc1 NO{u}\ns_or_b32 s98, s100, 1\ns_mov_b32 s99, 0\ns_mov_b32 s101, s98\ns_atomic_cmpswap s[98:99], s[84:85], 0 glc\nNO{u}:")
def nonce_fin(a):
    a("s_waitcnt lgkmcnt(0)\ns_cmp_eq_u32 s98, 0\ns_cselect_b32 s98, s101, s98")
def pollreg(a, v, vL, srow, nrows, ncols, need):
    a(f"""v_lshrrev_b32 v{v+2}, 4, v{vL}
    v_sub_u32 v{v}, {srow}, v{v+2}
    v_cmp_gt_u32 vcc, {nrows}, v{v+2}
    v_cmp_le_i32 s[94:95], 0, v{v}
    v_and_b32 v{v+2}, 15, v{vL}
    s_and_b64 s[94:95], vcc, s[94:95]
    v_cmp_gt_u32 vcc, {ncols}, v{v+2}
    v_lshlrev_b32 v{v}, 12, v{v}
    v_lshl_add_u32 v{v}, v{v+2}, 2, v{v}
    s_and_b64 vcc, vcc, s[94:95]
    v_add_u32 v{v}, s81, v{v}
    v_mov_b32 v{v+1}, -1
    v_mov_b32 v{v+2}, 0x7ff00000
    v_cndmask_b32 v{v+1}, v{v+1}, {3-need}, vcc
    v_cndmask_b32 v{v}, v{v+2}, v{v}, vcc""")
def stage_issue(a, vq, vL16):
    a(f"""s_mul_i32 s62, s28, 5
    s_lshr_b32 s62, s62, 1
    s_lshl_b32 s63, s27, 2
    s_add_u32 s63, s63, s25
    s_mul_i32 s64, s63, {QKV_T}
    s_lshl_b32 s65, s62, 10
    s_add_u32 s64, s64, s65
    s_mov_b32 s61, s28""")
    for i in range(3):
        for kv in range(2):
            a(f"s_add_u32 s65, s64, {((4*i-8)*QKV_T + (40+40*kv)*1024) & 0xffffffff}")
            if i < 2: a(f"s_cmp_lt_u32 s63, {8-4*i}\ns_cselect_b32 s65, 0x7ff00000, s65")
            for r in range(3):
                d = 24*i + 12*kv + 4*r
                a(f"buffer_load_dwordx4 v[{d}:{d+3}], v{vL16}, s[20:23], s65 offen offset:{1024*r}{SC}"); vq.push(f"kv{i}")
    a(f"s_and_b32 s66, s61, 1\nv_and_b32 v84, 0x1ff, v{vL16}\nv_lshrrev_b32 v85, 9, v{vL16}")
    uid[0] += 1
    for par in range(2):
        a(f"s_cmp_eq_u32 s66, {par}\ns_cbranch_scc0 AQ{par}_{uid[0]}")
        for hd in range(2):
            gb = 2*par + 5*hd; e = gb + (gb & 1); sg = gb if gb & 1 else gb + 4
            ad = lambda g: (g >> 2) * 1024 + (g & 1) * 512 + ((g >> 1) & 1) * 8
            a(f"v_mul_u32_u24 v86, {ad(e+2)-ad(e)}, v85\nv_add_u32 v86, v86, v84")
            for x, (vv, of) in enumerate([(86, ad(e)), (86, ad(e) + 512), (84, ad(sg))]):
                a(f"buffer_load_dwordx2 v[{72+6*hd+2*x}:{73+6*hd+2*x}], v{vv}, s[20:23], s64 offen offset:{of}{SC}")
        a(f"AQ{par}_{uid[0]}:")
    for _ in range(6): vq.push("kv2")
def wload(it):
    ks = 4 * it if it < 14 else 54 + 4 * (it - 14); b = 20 * (it % 12); o = []
    for s in range(5):
        pre = f"s_add_u32 s67, s57, {ks*5120 + (4096 if s == 4 else 0)}\n" if s in (0, 4) else ""
        o.append(pre + f"buffer_load_dwordx4 a[{b+4*s}:{b+3+4*s}], v242, s[20:23], s67 offen offset:{1024*(s&3)}{SC}")
    return o
def attention(a, vq, prof, vL):
    t = 246; QR = 226; vK, vV = 243, 244; vK1 = t + 4; Z = t + 9
    KB = 144; PB = 168; VF = 184; O = 200; MB = 216; M0 = 88
    a(f"""v_and_b32 v{t}, 31, v{vL}
    v_lshrrev_b32 v{t+1}, 5, v{vL}
    v_mul_u32_u24 v242, 288, v{t+1}
    v_lshl_add_u32 v242, v{t}, 3, v242
    s_mul_i32 s67, s25, {KT}
    s_mul_i32 s68, s66, {2*288}
    s_add_u32 s69, s67, s68
    v_mul_u32_u24 v{vK}, 576, v{t+1}
    v_lshl_add_u32 v{vK}, v{t}, 3, v{vK}
    v_add_u32 v{vK}, s69, v{vK}
    v_lshlrev_b32 v{t+4}, 3, v{t}
    v_add_u32 v{t+4}, s69, v{t+4}
    v_add_u32 v{t+5}, s67, v242
    s_mul_i32 s67, s25, {VT}
    s_add_u32 s67, s67, {VB}
    v_add_u32 v{t+6}, s67, v242
    v_lshlrev_b32 v{t+7}, 2, v{vL}
    v_add_u32 v{t+7}, s67, v{t+7}
    v_mov_b32 v{t+8}, 0x3f803f80
    v_and_b32 v{t+2}, 3, v{vL}
    v_bfe_u32 v{t+3}, v{vL}, 4, 1
    v_lshl_add_u32 v{t+2}, v{t+3}, 2, v{t+2}
    v_mul_u32_u24 v{vV}, 288, v{t+2}
    v_add_u32 v{vV}, s68, v{vV}
    v_add_u32 v{vV+1}, {5*288}, v{vV}
    v_cmp_lt_u32 vcc, 4, v{t+2}
    v_mov_b32 v{t+3}, {12*288}
    v_bfe_u32 v{t+2}, v{vL}, 2, 2
    v_cndmask_b32 v{vV}, v{vV}, v{t+3}, vcc
    v_cndmask_b32 v{vV+1}, v{vV+1}, v{t+3}, vcc
    v_lshlrev_b32 v{t+2}, 3, v{t+2}
    v_lshl_add_u32 v{t+2}, v{t+1}, 5, v{t+2}
    v_add_u32 v{t+2}, s67, v{t+2}
    v_add_u32 v{vV}, v{vV}, v{t+2}
    v_add_u32 v{vV+1}, v{vV+1}, v{t+2}
    v_lshlrev_b32 v242, 4, v{vL}
    v_lshlrev_b32 v{t+2}, 2, v{t+1}
    v_sub_u32 v{t+2}, v{t}, v{t+2}
    v_mov_b32 v{Z}, 0
    v_cmp_gt_u32 s[58:59], 32, v{vL}
    v_mov_b32 v220, 0x3f80
    s_lshr_b32 s56, s26, 2
    s_mul_i32 s57, s56, {W2_N}
    s_mul_i32 s67, s25, 5120
    s_add_u32 s57, s57, s67
    s_add_u32 s57, s57, {W2_OFF}
    v_cndmask_b32 v222, v{Z}, v{t+8}, s[58:59]
    v_cndmask_b32 v223, v{Z}, v220, s[58:59]
    v_mov_b32 v224, 0
    v_mov_b32 v225, 0
    v_mov_b32 v{MB+2}, 0
    v_mov_b32 v{MB+3}, 0
    s_barrier""")
    for i in range(3): a(f"ds_write_b32 v{t+7}, v{t+8} offset:{4*i*VT + 12*288}")
    for r in range(16): a(f"v_cmp_gt_i32 s[{MSK[r]}:{MSK[r]+1}], {8*(r>>2)+(r&3)}, v{t+2}")
    for i in range(3):
        a(f"s_waitcnt vmcnt({vq.wait(f'kv{i}')})")
        for kv in range(2):
            for r in range(3):
                d = 24*i + 12*kv + 4*r; base = 4*i*(VT if kv else KT) + 4*r*288
                a(f"ds_write_b64 v{t+5+kv}, v[{d}:{d+1}] offset:{base}\nds_write_b64 v{t+5+kv}, v[{d+2}:{d+3}] offset:{base+576}")
    for hd in range(2):
        for x in range(4): a(f"v_mov_b32 v{QR+8*hd+x}, v{72+6*hd+x}")
        a(f"v_cndmask_b32 v{QR+8*hd+4}, v{Z}, v{76+6*hd}, s[58:59]\nv_cndmask_b32 v{QR+8*hd+5}, v{Z}, v{77+6*hd}, s[58:59]\nv_mov_b32 v{QR+8*hd+6}, 0\nv_mov_b32 v{QR+8*hd+7}, 0")
    for b in range(3): a(f"v_mov_b32 v{KB+8*b+6}, 0\nv_mov_b32 v{KB+8*b+7}, 0")
    n = vq.wait("st")
    a(f"s_waitcnt lgkmcnt(0)" + (f" vmcnt({n})" if n is not None else "") + "\ns_barrier")
    flag(a, vq, 2, t)
    stamp(a, 4, prof)
    wq = [(o, f"g{it}") for it in range(12) for o in wload(it)]
    def wpre(n):
        for _ in range(n):
            if wq: o, tag = wq.pop(0); a(o); vq.push(tag)
    order = [8, 0, 1, 2, 3, 4, 5, 6, 7]
    lg = [0]
    def kread(hd, x):
        if x > 8: return
        i = order[x]; b = KB + 8 * (x % 3); e = 6 * hd; sg = 5 if hd else 4
        a(f"ds_read_b64 v[{b}:{b+1}], v{vK} offset:{i*KT + e*288}\nds_read_b64 v[{b+2}:{b+3}], v{vK} offset:{i*KT + e*288 + 288}\nds_read_b64 v[{b+4}:{b+5}], v{vK1} offset:{i*KT + sg*288}")
    def qk(hd, x, half):
        S = 16 * order[x]; b = KB + 8 * (x % 3) + 4 * half; q = QR + 8 * hd + 4 * half
        a(f"v_mfma_f32_32x32x16_bf16 v[{S}:{S+15}], v[{b}:{b+3}], v[{q}:{q+3}], {'0' if half == 0 else f'v[{S}:{S+15}]'}")
    def mx(hd, i):
        S = 16 * i; o = []
        o.append(f"s_cmp_ge_u32 s63, {8-i}\ns_cbranch_scc1 AV{hd}_{i}\n" + "".join(f"v_mov_b32 v{S+r}, 0xf149f2ca\n" for r in range(16)) + f"AV{hd}_{i}:")
        if i == 0: o += [f"v_cndmask_b32 v{r}, v{128+r}, v{r}, s[{MSK[r]}:{MSK[r]+1}]" for r in range(16)]
        for r in range(0, 16, 2):
            m = t + (r >> 1) % 2
            o.append(f"v_max3_f32 v{m}, v{S+r}, v{S+r+1}, v{m}" if i or r > 2 else f"v_max_f32 v{m}, v{S+r}, v{S+r+1}")
        return o
    def vread(hd, i, buf):
        for j in range(2):
            for jj in range(2):
                f = buf + 4 * j + 2 * jj
                a(f"ds_read_b64_tr_b16 v[{f}:{f+1}], v{vV+hd} offset:{i*VT + (16*j+8*jj)*8}")
    def mred():
        a(f"""v_max_f32 v{t}, v{t}, v{t+1}
        v_mov_b32 v{t+1}, v{t}
        s_nop 1
        v_permlane32_swap_b32 v{t}, v{t+1}
        s_nop 1
        v_max_f32 v{t}, v{t}, v{t+1}
        v_and_b32 v{t+1}, 0xffff0000, v{t}
        v_sub_f32 v{t}, v{t}, v{t+1}
        v_and_b32 v{t+2}, 0xffff0000, v{t}
        v_sub_f32 v{t}, v{t}, v{t+2}
        v_cvt_pk_bf16_f32 v{t+1}, -v{t+1}, -v{t+2}
        v_cvt_pk_bf16_f32 v{t+2}, -v{t}, v{Z}
        v_cndmask_b32 v{MB}, v{Z}, v{t+1}, s[58:59]
        v_cndmask_b32 v{MB+1}, v{Z}, v{t+2}, s[58:59]
        s_nop 1""")
    sub = lambda i: a(f"v_mfma_f32_32x32x16_bf16 v[{16*i}:{16*i+15}], v[222:225], v[{MB}:{MB+3}], v[{16*i}:{16*i+15}]")
    def pv(vb, pb, first):
        a(f"v_mfma_f32_32x32x16_bf16 v[{O}:{O+15}], v[{vb}:{vb+3}], v[{pb}:{pb+3}], {'0' if first else f'v[{O}:{O+15}]'}")
    def oepi(hd):
        a(f"""v_mov_b32 v220, v{O+8}
        v_mov_b32 v221, v{O+8}
        s_lshr_b32 s60, s61, 1
        s_mul_i32 s60, s60, 5
        v_permlane32_swap_b32 v220, v221
        s_lshl_b32 s68, s66, 1
        s_add_u32 s68, s68, s60
        v_rcp_f32 v221, v221
        s_mul_i32 s69, s63, {H_T}
        s_add_u32 s69, s69, {H_OFF + 108*1024}""")
        for r in range(12): a(f"v_mul_f32 v{O+r}, v{O+r}, v221")
        for r in range(4): a(f"v_cvt_pk_bf16_f32 v{O+12+r}, v{O+2*r}, v{O+2*r+1}")
        for r in range(2): a(f"v_cvt_pk_bf16_f32 v{QR+2*hd+r}, v{O+8+2*r}, v{O+9+2*r}")
        a(f"s_lshl_b32 s68, s68, 10\ns_add_u32 s68, s68, s69\nbuffer_store_dwordx4 v[{O+12}:{O+15}], v242, s[20:23], s68 offen offset:{1024*hd}{SC}"); vq.push("o")
    kread(0, 0); kread(0, 1)
    for x in range(9):
        a(f"s_waitcnt lgkmcnt({3 if x < 8 else 0})"); qk(0, x, 0); qk(0, x, 1); kread(0, x + 2); wpre(1)
        if x >= 3:
            for o in mx(0, x - 3): a(o)
    for hd in range(2):
        vread(hd, 8, 128); vread(hd, 0, VF)
        for o in mx(hd, 6) + mx(hd, 7): a(o)
        mred(); sub(0); sub(1)
        if hd == 1: oepi(0); poll_issue(a, vq, t + 5, t + 6, "ph")
        else:
            a(f"v_lshrrev_b32 v220, 4, v242\ns_lshl_b32 s60, s24, 1\ns_bfe_u32 s62, s26, 0x10001\ns_add_u32 s62, s62, s60"); pollreg(a, t + 6, 220, "s62", 1, 14, 2); kread(1, 0); kread(1, 1); kread(1, 2)
        for i in range(8):
            S = 16 * i; P = PB + 8 * (i & 1); fill = mx(1, i - 3) if (hd == 0 and i >= 3) else []
            for r in range(16):
                a(f"v_exp_f32 v{S+r}, v{S+r}")
                if r == 1 and i + 2 < 8: sub(i + 2)
                if i == 1:
                    if r == 2: a("s_waitcnt lgkmcnt(0)"); pv(128, 136, True)
                    if r == 4: pv(132, 140, False)
                elif r == 4 and i: a("s_waitcnt lgkmcnt(0)")
                if r == 6 and i: pv(VF + 8 * ((i-1) & 1), PB + 8 * ((i-1) & 1), False)
                if r == 9 and i: pv(VF + 8 * ((i-1) & 1) + 4, PB + 8 * ((i-1) & 1) + 4, False)
                if r == 10 and i < 7: vread(hd, i + 1, VF + 8 * ((i+1) & 1))
                if hd == 0 and i >= 1:
                    x = i - 1 if i >= 2 else None
                    if i == 2 and r in (0, 3): qk(1, 0, r // 3)
                    if x and r in (12, 14): qk(1, x, (r - 12) // 2)
                    if r == 15 and i >= 2: kread(1, i + 1)
                if r in (3, 7, 11, 13): wpre(1)
                if r >= 3 and r & 1: a(f"v_cvt_pk_bf16_f32 v{P+(r-3)//2}, v{S+r-3}, v{S+r-2}")
                for _ in range(2 if len(fill) > 16 - r else 1):
                    if fill and r >= 2: a(fill.pop(0))
            a(f"v_cvt_pk_bf16_f32 v{P+7}, v{S+14}, v{S+15}")
            assert not fill
            if i == 0:
                for e in range(8):
                    a(f"v_cndmask_b32 v220, v{Z}, v{S+2*e}, s[{MSK[2*e]}:{MSK[2*e]+1}]\nv_cndmask_b32 v221, v{Z}, v{S+2*e+1}, s[{MSK[2*e+1]}:{MSK[2*e+1]+1}]\nv_cvt_pk_bf16_f32 v220, v220, v221\nv_xor_b32 v{136+e}, v{P+e}, v220\nv_mov_b32 v{P+e}, v220")
        a("s_waitcnt lgkmcnt(0)\ns_nop 0"); pv(VF + 8, PB + 8, False); pv(VF + 12, PB + 12, False)
        if hd == 0:
            qk(1, 7, 0); qk(1, 7, 1); qk(1, 8, 0); qk(1, 8, 1)
            for o in mx(1, 5): a(o)
            a("s_nop 1")
        stamp(a, 5 + hd, prof)
    wpre(99)
    a("s_nop 7\ns_nop 3"); oepi(1)
    a(f"s_lshl_b32 s60, s60, 10\ns_add_u32 s60, s60, s69\ns_lshl_b32 s68, s66, 9\ns_add_u32 s60, s60, s68\ns_add_u32 s60, s60, 4096\ns_mov_b64 exec, s[58:59]\nbuffer_store_dwordx4 v[{QR}:{QR+3}], v242, s[20:23], s60 offen{SC}\ns_mov_b64 exec, -1"); vq.push("o")
def gemm2(a, vq, prof):
    vL = 95; NT = 9
    a(f"""v_lshrrev_b32 v{vL}, 4, v242
    s_lshl_b32 s60, s24, 2
    s_and_b32 s61, s26, 3
    s_add_u32 s60, s60, s61
    s_lshr_b32 s61, s60, 1""")
    poll_check(a, vq, 251, 252, 253, 2, "ph"); a("s_barrier")
    a(f"""v_and_b32 v80, 15, v{vL}
    v_lshrrev_b32 v81, 4, v{vL}
    v_lshlrev_b32 v82, 9, v81
    v_lshl_add_u32 v82, v80, 4, v82
    v_add_u32 v83, {H_T}, v82
    s_mul_i32 s62, s60, {2*H_T}
    s_lshl_b32 s63, s25, 11
    s_add_u32 s62, s62, s63
    s_add_u32 s62, s62, {H_OFF}""")
    def tload(it):
        ks = 4 * it if it < 14 else 54 + 4 * (it - 14); b = 96 + 16 * (it % NT)
        a(f"s_add_u32 s66, s62, {ks*2048}")
        if it == 13: a("s_cmp_ge_u32 s25, 2\ns_cselect_b32 s66, 0x7ff00000, s66")
        for s in range(4):
            a(f"buffer_load_dwordx4 v[{b+4*s}:{b+4*s+3}], v{82+(s>>1)}, s[20:23], s66 offen offset:{256*(s&1)}{SC}"); vq.push(f"g{it}")
    for it in range(4): tload(it)
    a(f"s_waitcnt vmcnt({vq.wait('o')})\ns_barrier"); flag(a, vq, 3, 90)
    for it in range(4, NT - 1): tload(it)
    a(f"""v_lshrrev_b32 v86, 2, v{vL}
    v_and_b32 v87, 3, v{vL}
    s_lshl_b32 s64, s60, 2
    s_add_u32 s64, s64, s25
    s_mul_i32 s64, s64, {16*1280}
    s_mul_i32 s65, s56, 160
    s_add_u32 s64, s64, s65
    v_mul_u32_u24 v88, 1280, v86
    v_lshl_add_u32 v88, v87, 4, v88
    v_cmp_gt_u32 s[58:59], 2, v87
    s_mov_b32 s8, s96
    s_mov_b32 s9, s97
    s_mov_b32 s10, {2048*1280}
    s_mov_b32 s11, 0x20000""")
    pollreg(a, 89, vL, "s61", 1, 16, 3)
    stamp(a, 7, prof)
    for it in range(19):
        nx = it + NT - 1
        if nx == 12: poll_issue(a, vq, 251, 89, "po")
        if nx == 14: poll_check(a, vq, 251, 89, 90, 3, "po"); a("s_barrier")
        if nx < 19: tload(nx)
        if 1 <= it <= 7:
            for o in wload(it + 11): a(o); vq.push(f"g{it+11}")
        if it == 8:
            for i in range(3):
                if i == 2: a("s_mov_b64 exec, s[58:59]")
                a(f"buffer_load_dwordx4 v[{240+4*i}:{243+4*i}], v88, s[4:7], s64 offen offset:{64*i}"); vq.push("xr")
            a("s_mov_b64 exec, -1")
        n = vq.wait(f"g{it}")
        if n is not None: a(f"s_waitcnt vmcnt({n})")
        b = 96 + 16 * (it % NT); w = 20 * (it % 12)
        for s4 in range(4):
            for s in range(5):
                A = 20 * s4 + 4 * s
                a(f"v_mfma_f32_16x16x32_bf16 v[{A}:{A+3}], a[{w+4*s}:{w+3+4*s}], v[{b+4*s4}:{b+4*s4+3}], {'0' if it == 0 else f'v[{A}:{A+3}]'}")
    stamp(a, 8, prof)
    a(f"s_mul_i32 s66, s25, 20480\nv_lshlrev_b32 v84, 4, v{vL}\nv_add_u32 v84, s66, v84\ns_mul_i32 s66, s25, 5120\nv_lshrrev_b32 v80, 1, v87\nv_lshlrev_b32 v80, 10, v80\nv_and_b32 v81, 1, v87\nv_lshl_add_u32 v80, v81, 9, v80\nv_lshl_add_u32 v80, v86, 4, v80\nv_add_u32 v80, s66, v80\nv_add_u32 v81, 40960, v80")
    for i in range(20): a(f"ds_write_b128 v84, v[{4*i}:{4*i+3}] offset:{1024*i}")
    a("s_waitcnt lgkmcnt(0)\ns_barrier")
    for i in range(3):
        for w in range(4):
            for q in range(2):
                d = 96 + 32 * i + 8 * w + 4 * q
                a(f"ds_read_b128 v[{d}:{d+3}], v{80+(w>>1)} offset:{20480*(w&1) + 2048*i + 256*q}")
    for i in range(3):
        a(f"s_waitcnt lgkmcnt({min(15, 16-8*i)})")
        d = 96 + 32 * i
        for e in range(8): a(f"v_add_f32 v{d+e}, v{d+e}, v{d+8+e}\nv_add_f32 v{d+16+e}, v{d+16+e}, v{d+24+e}")
        for e in range(4): a(f"v_lshlrev_b32 v{d+8+2*e}, 16, v{240+4*i+e}\nv_and_b32 v{d+9+2*e}, 0xffff0000, v{240+4*i+e}")
        for e in range(8): a(f"v_add_f32 v{d+e}, v{d+e}, v{d+16+e}")
        for e in range(8): a(f"v_add_f32 v{d+e}, v{d+e}, v{d+8+e}")
        for e in range(4): a(f"v_cvt_pk_bf16_f32 v{d+16+e}, v{d+2*e}, v{d+2*e+1}")
        if i == 2: a("s_mov_b64 exec, s[58:59]")
        a(f"buffer_store_dwordx4 v[{d+16}:{d+19}], v88, s[8:11], s64 offen offset:{64*i}")
    a("s_mov_b64 exec, -1")
    stamp(a, 9, prof)
def kernel(name, prof):
    a = Asm()
    k1_setup(a)
    a(f"""s_load_dwordx2 s[84:85], s[0:1], 64
    s_load_dwordx2 s[96:97], s[0:1], 56
    s_memrealtime s[100:101]
    s_lshl_b32 s89, s27, 12
    s_lshl_b32 s81, s28, 2
    s_add_u32 s89, s89, s81
    s_add_u32 s89, s89, {FLAG_OFF}
    s_cmp_eq_u32 s25, 0
    s_mov_b32 s81, 0x7fe00000
    s_cselect_b32 s81, {FLAG_OFF}, s81
    s_cmp_ge_u32 s28, 14
    s_cbranch_scc1 K1_RP""")
    k1_gemm_setup(a)
    a("s_cmp_eq_u32 s28, 13\ns_cbranch_scc1 K1_SP")
    class H:
        start = staticmethod(nonce)
        def flag(a, vq): flag(a, vq, 1, 174)
        def pre(a, vq): a("v_lshrrev_b32 v100, 4, v170"); pollreg(a, 101, 100, "s27", 3, 14, 1); poll_issue(a, vq, 105, 101, "pp")
        def post(a, vq): poll_check(a, vq, 105, 101, 102, 1, "pp"); a("s_barrier"); stage_issue(a, vq, 170)
        def w2a(a, vq):
            nonce_fin(a)
            a(f"s_lshl_b32 s60, s24, 12\ns_add_u32 s60, s60, s81\ns_add_u32 s60, s60, 0x40000\nv_and_b32 v190, 0x1ff, v170\nv_lshrrev_b32 v190, 2, v190\nv_add_u32 v190, s60, v190"); poll_issue(a, vq, 191, 190, "pw")
        def w2chk(a, vq): a("v_mov_b32 v174, 2"); poll_check(a, vq, 191, 190, 174, 1, "pw")
        def w2b(a, vq):
            a(f"s_lshl_b32 s60, s26, 2\ns_add_u32 s60, s60, s25\ns_mul_i32 s60, s60, {24*1024}\ns_add_u32 s60, s60, {W2_OFF}")
            return [((f"s_add_u32 s60, s60, 4096\n" if i and i % 4 == 0 else "") + f"buffer_load_dwordx4 a[112:115], v170, s[20:23], s60 offen offset:{1024*(i&3)}{SC}", "pf") for i in range(0 if NOPF else 24)]
    q1 = k1_main(a, False, prof, STS, H)
    a("s_branch K1_DONE\nK1_SP:")
    a(f"s_mov_b32 s31, {14*256}\ns_mov_b32 s32, {26*128}\ns_add_u32 s34, s52, {14*8192}\ns_add_u32 s35, s53, {26*4096}")
    q2 = k1_main(a, True, prof, STS, H)
    assert q1.q[q1.q.index('kv0'):] == q2.q[q2.q.index('kv0'):]
    a(f"s_branch K1_DONE\nK1_RP:\ns_waitcnt lgkmcnt(0)\ns_sub_u32 s82, s28, 14\ns_lshl_b32 s82, s82, 4\ns_add_u32 s82, s82, s27\ns_lshl_b32 s82, s82, 2\ns_add_u32 s82, s82, {FLAG_OFF + 0x40000}")
    nonce(a)
    k1_repack(a, SC)
    vq = VQ(); nonce_fin(a)
    a("s_waitcnt vmcnt(0)\ns_barrier"); flag(a, vq, 1, 190, True)
    H.w2a(a, vq); H.w2chk(a, vq); a("s_barrier")
    for o, _ in H.w2b(a, vq): a(o)
    a("s_waitcnt vmcnt(0)"); vq = VQ()
    H.pre(a, vq); H.post(a, vq)
    a("s_waitcnt vmcnt(0)\nK1_DONE:\nv_lshrrev_b32 v160, 4, v170")
    attention(a, q1, prof, 160)
    gemm2(a, q1, prof)
    if prof: a("s_memrealtime s[90:91]\ns_waitcnt lgkmcnt(0)\ns_sub_u32 s81, s90, s100"); prof_out(a, 12)
    a("K1_END:\ns_endpgm")
    return kernel_head(name) + a.text(), kernel_desc(name, 496, 256)
```

```python
import sys
from asmlib import *
import k1
HDR = open("parallel_sum__sliding_block__geglu_ffn__prompt.s.ref").read().split("; Override")[0]
def build(parts):
    s = HDR
    for name, lds, _, _ in parts: s += f"; @launch kernel={name} grid=(256,1,1) block=(256,1,1) lds={lds}\n"
    s += '.amdgcn_target "amdgcn-amd-amdhsa--gfx950"\n'
    for _, _, c, _ in parts: s += c
    for _, _, _, d in parts: s += d
    return s
if __name__ == "__main__":
    import km
    prof = "prof" in sys.argv
    n = "parallel_sum__sliding_block__geglu_ffn__prompt_kernel"
    c, d = km.kernel(n, prof)
    t = build([(n, 163840, c, d)])
    if not prof: t = t.replace(f"@launch kernel={n} ", "@launch ")
    open(sys.argv[1], "w").write(t)
```

```python
from asmlib import *
import math
QKV_OFF = 0;            QKV_T = 120*1024
H_OFF = 0x800000;       H_T = 148*1024
W2_OFF = 0x1200000;     W2_N = 74*5120
FLAG_OFF = 0x1600000
WS_SZ = 0x1800000
def f2u(x):
    import struct; return struct.unpack("<I", struct.pack("<f", x))[0]
class VQ:
    def __init__(s): s.q = []
    def push(s, tag): s.q.append(tag)
    def count(s, tag): return min(63, len(s.q) - 1 - max(i for i, t in enumerate(s.q) if t == tag)) if tag in s.q else 63
    def peek(s, tag): return tag in s.q
    def wait(s, tag):
        idx = [i for i, t in enumerate(s.q) if t == tag]
        if not idx: return None
        n = len(s.q) - 1 - idx[-1]
        s.q = s.q[idx[-1]+1:]
        return min(n, 63)
def stamp(a, i, prof):
    if prof: a(f"s_memtime s[90:91]\ns_waitcnt lgkmcnt(0)\ns_sub_u32 s{70+i}, s90, s92")
import os
DIAG = int(os.environ.get("DIAG", 0))
NS = 10
XA_ = int(os.environ.get('XMAP', 8)); TLB = int(os.environ.get('TLB', 0))
PD = int(os.environ.get('PD', 2))
def k1_main(a, special, prof, SC, H=None):
    vq = VQ()
    vP, vF = 160, 162; vA = [164, 165, 166, 167, 168, 169]; vSt = 170; vR, vMR, vC0 = 171, 172, 173
    T0 = 174; AB = 192; WF = 64
    steps = ["P", "P", "F"] if special else ["P", "F", "F"]
    def dma(gs):
        if gs >= 30: return []
        st, sl = divmod(gs, 10); out = []
        P = steps[st] == "P"; stride = 3840 if P else 3456
        for half in range(2):
            srd = "s[8:11]" if P else ("s[12:15]" if half == 0 else "s[16:19]")
            pre = f"s_add_u32 m0, s36, {(gs % NS) * 16384 + half * 8192}\n"
            pre += f"s_add_u32 s37, s{30+st}, {128 * half + 64 * sl * stride}\n" if (P or half == 0) else "s_nop 0\n"
            v = vP if P else vF
            out.append(pre + f"buffer_load_dwordx4 v{v}, {srd}, s37 offen lds")
            out.append(f"buffer_load_dwordx4 v{v+1}, {srd}, s37 offen offset:1024 lds")
        return out
    def xd(c):
        o = []
        for rg in range(4):
            pre = f"s_add_u32 m0, s36, {c*16384 + (rg>>1)*8192}\ns_add_u32 s37, s43, {c*128}\n" if rg % 2 == 0 else ""
            o.append((pre + f"buffer_load_dwordx4 v{192+rg}, s[4:7], s37 offen" + (" offset:1024" if rg & 1 else "") + " lds", f"x{c}"))
        return o
    XA = int(os.environ.get("XA", 4))
    for c in range(XA):
        for o, tag in xd(c): a(o); vq.push(tag)
        if c == 0 and TLB:
            a("v_lshlrev_b32 v204, 16, v170\ns_mov_b64 exec, 0xffffff")
            a("buffer_load_dword v205, v204, s[20:23], 0 offen"); vq.push("t")
            a("s_mov_b64 exec, 7")
            for srd in ("s[8:11]", "s[12:15]", "s[16:19]", "s[44:47]", "s[48:51]"): a(f"buffer_load_dword v205, v204, {srd}, 0 offen"); vq.push("t")
            a("s_mov_b64 exec, -1")
    S = 200
    a(f"v_mov_b32 v{S}, 0\nv_mov_b32 v{S+1}, 0\nv_mov_b32 v{S+2}, 0\nv_mov_b32 v{S+3}, 0\ns_mov_b32 s38, 0x3f803f80")
    def st_ops(c, inter=[]):
        inter = list(inter); per = (len(inter) + 3) // 4
        for s in range(4*c, 4*c+4):
            for o, tag in inter[:per]: a(o); vq.push(tag)
            inter = inter[per:]
            if c < 0: continue
            for e in range(4):
                a(f"v_dot2_f32_bf16 v{S+(e&1)}, v{4*s+e}, s38, v{S+(e&1)}\nv_dot2_f32_bf16 v{S+2+(e&1)}, v{4*s+e}, v{4*s+e}, v{S+2+(e&1)}")
    for c in range(10):
        a(f"s_waitcnt vmcnt({vq.wait(f'x{c}')})")
        if c in (4, 8):
            for q in range(4): a(f"v_add_u32 v{196+q}, 0x10000, v{196+q}")
        for q in range(4): a(f"ds_read_b128 v[{16*c+4*q}:{16*c+4*q+3}], v{196+q} offset:{(c&3)*16384}")
        j = c + XA - 10
        st_ops(c - 1, xd(c + XA) if j < 0 else ([(d, f"w{j}") for d in dma(2*j) + dma(2*j+1)] if j < 2 else []))
        a("s_waitcnt lgkmcnt(0)")
    st_ops(9)
    a(f"""s_nop 2
    v_add_f32 v{S}, v{S}, v{S+1}
    v_add_f32 v{S+2}, v{S+2}, v{S+3}
    v_mov_b32 v{S+1}, v{S}
    v_mov_b32 v{S+3}, v{S+2}
    s_nop 1
    v_permlane32_swap_b32 v{S}, v{S+1}
    v_permlane32_swap_b32 v{S+2}, v{S+3}
    s_nop 1
    v_add_f32 v{S}, v{S}, v{S+1}
    v_add_f32 v{S+2}, v{S+2}, v{S+3}
    v_mul_f32 v{S}, {hex(f2u(-1.0/640))}, v{S}
    v_mul_f32 v{S+2}, {hex(f2u(1.0/640))}, v{S+2}
    v_fma_f32 v{S+2}, -v{S}, v{S}, v{S+2}
    v_max_f32 v{S+2}, 0, v{S+2}
    v_add_f32 v{S+2}, {hex(f2u(1e-5))}, v{S+2}
    v_rsq_f32 v{vR}, v{S+2}
    s_mov_b32 s41, {hex(f2u(-2*math.log2(math.e)*math.sqrt(2/math.pi)))}
    v_mov_b32 v{vC0}, s41
    v_mul_f32 v{vMR}, v{S}, v{vR}
    s_mov_b32 s41, {hex(f2u(-2*math.log2(math.e)*math.sqrt(2/math.pi)*0.044715))}""")
    def ln_ops(s):
        o = []
        for e in range(4):
            t = AB + 16 + 2 * e
            o.append(f"v_lshlrev_b32 v{t}, 16, v{4*s+e}")
            o.append(f"v_and_b32 v{t+1}, 0xffff0000, v{4*s+e}")
            o.append(f"v_fma_f32 v{t}, v{t}, v{vR}, v{vMR}")
            o.append(f"v_fma_f32 v{t+1}, v{t+1}, v{vR}, v{vMR}")
            o.append(f"v_cvt_pk_bf16_f32 v{4*s+e}, v{t}, v{t+1}")
        return o
    def epi(st):
        o = []; inV = st == 1
        if steps[st] == "P":
            for t in range(4):
                for j in range(2):
                    b = AB + 16*t + 8*j if inV else T0; d = T0 + 8 + 4 * j
                    if not inV:
                        for e in range(8): o.append(f"v_accvgpr_read_b32 v{b+e}, a{16*t+8*j+e}")
                        for e in range(8): o.append(f"v_mul_f32 v{b+e}, s40, v{b+e}")
                    for e in range(4): o.append(f"v_cvt_pk_bf16_f32 v{d+e}, v{b+2*e}, v{b+2*e+1}")
                    o.append(f"s_add_u32 s42, s{33+st}, {(2*t+j)*1024}\nbuffer_store_dwordx4 v[{d}:{d+3}], v{vSt}, s[20:23], s42 offen{SC}")
        else:
            for t in range(2):
                for j in range(2):
                    d = T0 + 8 + 4 * j
                    for q in range(2):
                        src = 16 * t + 8 * j + 4 * q; g = AB + src; u = g + 32; z = T0 + 4 * q
                        if not inV:
                            for e in range(4): o.append(f"v_accvgpr_read_b32 v{g+e}, a{src+e}")
                            for e in range(4): o.append(f"v_accvgpr_read_b32 v{u+e}, a{src+32+e}")
                        for e in range(4): o.append(f"v_mul_f32 v{z+e}, v{g+e}, v{g+e}")
                        for e in range(4): o.append(f"v_fma_f32 v{z+e}, v{z+e}, s41, v{vC0}")
                        for e in range(4): o.append(f"v_mul_f32 v{z+e}, v{z+e}, v{g+e}")
                        for e in range(4): o.append(f"v_exp_f32 v{z+e}, v{z+e}\nv_mul_f32 v{g+e}, v{g+e}, v{u+e}")
                        for e in range(4): o.append(f"v_add_f32 v{z+e}, 1.0, v{z+e}")
                        for e in range(4): o.append(f"v_rcp_f32 v{z+e}, v{z+e}")
                        for e in range(4): o.append(f"v_mul_f32 v{g+e}, v{g+e}, v{z+e}")
                        for e in range(2): o.append(f"v_cvt_pk_bf16_f32 v{d+2*q+e}, v{g+2*e}, v{g+2*e+1}")
                    o.append(f"s_add_u32 s42, s{33+st}, {(2*t+j)*1024}\nbuffer_store_dwordx4 v[{d}:{d+3}], v{vSt}, s[20:23], s42 offen{SC}")
        return o
    def reads(gk):
        if gk >= 120: return []
        gs, ks = divmod(gk, 4); o = []
        for t in range(4):
            W = WF + 16 * (gk % (PD + 1)) + 4 * t
            for j in range(2):
                off = (gs % NS) * 16384 + (t >> 1) * 8192 + ks * 2048 + j * 512
                o.append(f"ds_read_b64_tr_b16 {'v' if DIAG==4 else 'a'}[{W+2*j+(144 if DIAG==4 else 0)}:{W+2*j+1+(144 if DIAG==4 else 0)}], v{vA[(t&1) + 2*(off>>16)]} offset:{off & 0xffff}")
        return o
    for o in ln_ops(0): a(o)
    a(f"s_waitcnt vmcnt({vq.wait('w0')})\ns_barrier")
    for g in range(PD):
        for o in reads(g): a(o)
    stamp(a, 0, prof)
    issued = 2; pend = []
    if H: H.start(a)
    for st in range(3):
        fill = epi(st - 1) if st > 0 else []
        nf = len(fill); done = 0
        for k in range(40):
            gk = 40 * st + k; ss = gk // 8
            lg = 8 * min(PD - 1, 119 - gk)
            a(f"s_waitcnt lgkmcnt({lg})")
            rd = reads(gk + PD)
            ln = ln_ops(k + 1) if (st == 0 and k < 39) else []
            lsp = [0, 3, 6, 13, 20]
            for t in range(4):
                W = WF + 16 * (gk % (PD + 1)) + 4 * t
                acc = f"v[{AB+16*t}:{AB+16*t+15}]" if st == 1 else f"a[{16*t}:{16*t+15}]"
                a(f"v_mfma_f32_32x32x16_bf16 {acc}, a[{W}:{W+3}], v[{4*k}:{4*k+3}], {'0' if k == 0 else acc}")
                if t == 0 and k % 8 == 0:
                    fl = H and ss == (14 if special else 10)
                    n = vq.wait("st") if fl else None
                    n = vq.wait(f"w{ss+1}") if vq.peek(f"w{ss+1}") else n
                    if n is not None: a(f"s_waitcnt vmcnt({n})")
                    if H and ss == 10: H.w2chk(a, vq)
                    if ss < 14 or fl: a("s_barrier")
                    assert not pend or ss > 11
                    if fl: H.flag(a, vq)
                    if H and ss == 14: H.pre(a, vq)
                    if H and ss == 8: H.w2a(a, vq)
                    if H and ss == 11: pend = H.w2b(a, vq)
                    for _ in range(2):
                        if issued <= ss + 4 and issued < 15:
                            pend += [(d, f"w{issued}") for d in dma(2 * issued) + dma(2 * issued + 1)]; issued += 1
                    rate = len(pend) // 8 if ss < 11 else 1
                if t < 2:
                    for o in rd[4*t:4*t+4]: a(o)
                for o in ln[lsp[t]:lsp[t+1]]: a(o)
                if pend and (t == 2 or (t == 3 and rate == 2)):
                    o, tag = pend.pop(0); a(o); vq.push(tag)
                m = 8 * k + [1, 2, 5, 8][t]
                tgt = min(nf, max(0, (m - 8) * nf // (300 if steps[st-1] == 'F' else 170)))
                while done < tgt:
                    a(fill[done])
                    if "buffer_store" in fill[done]: vq.push("st")
                    done += 1
            if ln: a("s_nop 0")
        assert done == nf
        stamp(a, [1, 10, 2][st], prof)
    if H: H.post(a, vq)
    a("s_nop 7\ns_nop 3")
    for o in epi(2):
        a(o)
        if "buffer_store" in o: vq.push("st")
    stamp(a, 3, prof)
    return vq

def k1_setup(a):
    a(f"""s_cmp_ge_u32 s2, 256
    s_cbranch_scc1 K1_END
    s_memtime s[92:93]
    s_load_dwordx2 s[4:5], s[0:1], 0
    s_load_dwordx2 s[8:9], s[0:1], 8
    s_load_dwordx2 s[12:13], s[0:1], 32
    s_load_dwordx2 s[16:17], s[0:1], 40
    s_load_dwordx2 s[20:21], s[0:1], 72
    s_load_dwordx2 s[44:45], s[0:1], 48
    s_load_dwordx2 s[48:49], s[0:1], 16
    s_mov_b32 s6, {2048*1280}
    s_mov_b32 s7, 0x20000
    s_mov_b32 s10, {640*3840}
    s_mov_b32 s11, 0x20000
    s_mov_b32 s14, {640*3456}
    s_mov_b32 s15, 0x20000
    s_mov_b32 s18, {640*3456}
    s_mov_b32 s19, 0x20000
    s_mov_b32 s22, {WS_SZ}
    s_mov_b32 s23, 0x20000
    s_mov_b32 s46, {1728*1280}
    s_mov_b32 s47, 0x20000
    s_mov_b32 s50, {640*1280}
    s_mov_b32 s51, 0x20000
    v_lshrrev_b32 v200, 6, v0
    v_and_b32 v201, 63, v0
    s_and_b32 s24, s2, 7
    v_readfirstlane_b32 s25, v200
    s_lshr_b32 s26, s2, 3
    s_and_b32 s27, s24, {16//XA_-1}
    s_lshl_b32 s27, s27, {XA_.bit_length()-1}
    s_and_b32 s28, s26, {XA_-1}
    s_add_u32 s27, s27, s28
    s_lshr_b32 s28, s24, {(16//XA_).bit_length()-1}
    s_lshl_b32 s28, s28, {(32//XA_).bit_length()-1}
    s_lshr_b32 s29, s26, {XA_.bit_length()-1}
    s_add_u32 s28, s28, s29
    v_lshlrev_b32 v170, 4, v201""")
def k1_gemm_setup(a):
    a(f"""v_lshrrev_b32 v202, 3, v201
    v_and_b32 v203, 7, v201
    v_lshrrev_b32 v204, 1, v202
    v_xor_b32 v207, v203, v204
    v_lshlrev_b32 v207, 4, v207
    v_mul_u32_u24 v192, 1280, v202
    v_add_u32 v192, v192, v207
    v_add_u32 v193, {8*1280-1024}, v192
    v_xor_b32 v194, 64, v192
    v_add_u32 v194, {16*1280}, v194
    v_add_u32 v195, {8*1280-1024}, v194
    s_lshl_b32 s29, s27, 2
    s_add_u32 s29, s29, s25
    s_mul_i32 s43, s29, {32*1280}
    s_lshl_b32 s36, s25, 11
    v_and_b32 v204, 1, v204
    v_lshlrev_b32 v204, 2, v204
    v_xor_b32 v203, v203, v204
    v_lshlrev_b32 v203, 4, v203
    s_lshl_b32 s30, s25, 4
    v_add_u32 v202, s30, v202
    v_mul_u32_u24 v160, 3840, v202
    v_mul_u32_u24 v162, 3456, v202
    v_add_u32 v160, v160, v203
    v_add_u32 v162, v162, v203
    v_add_u32 v161, {8*3840-1024}, v160
    v_add_u32 v163, {8*3456-1024}, v162
    v_and_b32 v202, 3, v201
    v_bfe_u32 v203, v201, 2, 2
    v_bfe_u32 v204, v201, 4, 1
    v_lshrrev_b32 v205, 5, v201
    v_lshlrev_b32 v206, 10, v205
    v_lshl_add_u32 v206, v203, 7, v206
    v_lshl_add_u32 v206, v204, 5, v206
    v_lshl_add_u32 v206, v202, 3, v206
    v_lshrrev_b32 v203, 1, v203
    v_lshlrev_b32 v203, 6, v203
    v_add_u32 v164, v206, v203
    {"v_lshlrev_b32 v164, 3, v201" if DIAG == 3 else ""}
    v_xor_b32 v165, 64, v164
    v_add_u32 v166, 0x10000, v164
    v_add_u32 v167, 0x10000, v165
    v_add_u32 v168, 0x20000, v164
    v_add_u32 v169, 0x20000, v165
    v_bfe_u32 v202, v201, 1, 2
    v_lshl_or_b32 v202, v204, 2, v202
    v_xor_b32 v202, v202, v205
    v_lshlrev_b32 v202, 4, v202
    v_lshl_add_u32 v202, v204, 13, v202
    v_and_b32 v203, 15, v201
    v_lshl_add_u32 v202, v203, 7, v202
    v_add_u32 v196, s36, v202
    v_xor_b32 v197, 32, v196
    v_xor_b32 v198, 64, v196
    v_xor_b32 v199, 96, v196
    s_mul_i32 s52, s29, {QKV_T}
    s_mul_i32 s53, s29, {H_T}
    s_add_u32 s53, s53, {H_OFF}
    s_lshl_b32 s30, s28, 8
    s_lshl_b32 s33, s28, 13
    s_add_u32 s33, s33, s52
    s_cmp_lt_u32 s28, 5
    s_cselect_b32 s40, {hex(f2u(20**-0.5*math.log2(math.e)))}, 1.0
    s_lshl_b32 s31, s28, 8
    s_add_u32 s32, s31, 128
    s_lshl_b32 s34, s28, 13
    s_add_u32 s34, s34, s53
    s_add_u32 s35, s34, 4096
    s_waitcnt lgkmcnt(0)""")
def k1_repack(a, SC):
    a(f"""s_sub_u32 s29, s28, 14
    s_lshl_b32 s29, s29, 4
    s_add_u32 s29, s29, s27
    v_lshrrev_b32 v1, 3, v201
    v_and_b32 v2, 7, v201
    v_mul_u32_u24 v3, 1280, v1
    v_lshl_add_u32 v3, v2, 4, v3
    v_lshrrev_b32 v4, 2, v1
    v_mul_u32_u24 v4, {36*1280}, v4
    v_add_u32 v4, v4, v3
    v_lshrrev_b32 v5, 5, v201
    v_mul_u32_u24 v5, 20480, v5
    v_bfe_u32 v6, v201, 2, 3
    v_lshl_add_u32 v5, v6, 7, v5
    v_and_b32 v6, 3, v201
    v_lshl_add_u32 v5, v6, 3, v5
    s_mul_i32 s36, s25, 10240
    s_lshr_b32 s54, s25, 1
    s_and_b32 s55, s25, 1
    s_waitcnt lgkmcnt(0)
    RP_LOOP:
    s_cmp_ge_u32 s29, 54
    s_cbranch_scc1 RP_O
    s_lshl_b32 s30, s29, 5
    s_lshl_b32 s31, s25, 3
    s_add_u32 s30, s30, s31
    s_mul_i32 s30, s30, 1280""")
    for cb in range(10): a(f"s_add_u32 m0, s36, {cb*1024}\ns_add_u32 s37, s30, {cb*128}\nbuffer_load_dwordx4 v3, s[44:47], s37 offen lds")
    a(f"""s_branch RP_T
    RP_O:
    s_sub_u32 s30, s29, 54
    s_lshl_b32 s30, s30, 1
    s_add_u32 s30, s30, s54
    s_mul_i32 s31, s30, 52429
    s_lshr_b32 s31, s31, 18
    s_mul_i32 s32, s31, 5
    s_sub_u32 s32, s30, s32
    s_mul_i32 s31, s31, 80
    s_cmp_eq_u32 s32, 4
    s_cbranch_scc1 RP_L
    s_mul_i32 s32, s32, 20
    s_add_u32 s31, s31, s32
    s_lshl_b32 s32, s55, 3
    s_add_u32 s31, s31, s32
    v_mov_b32 v7, v3
    s_branch RP_O2
    RP_L:
    s_mul_i32 s32, s55, 20
    s_add_u32 s31, s31, s32
    s_add_u32 s31, s31, 16
    v_mov_b32 v7, v4
    RP_O2:
    s_mul_i32 s30, s31, 1280""")
    for cb in range(10): a(f"s_add_u32 m0, s36, {cb*1024}\ns_add_u32 s37, s30, {cb*128}\nbuffer_load_dwordx4 v7, s[48:51], s37 offen lds")
    a(f"""RP_T:
    s_waitcnt vmcnt(0)
    s_barrier
    s_mul_i32 s30, s25, 2560
    s_and_b32 s31, s25, 1
    s_mul_i32 s31, s31, {64-512}
    s_add_u32 s30, s30, s31
    v_add_u32 v8, s30, v5
    s_mul_i32 s30, s25, {2*W2_N}
    s_mul_i32 s31, s29, 5120
    s_add_u32 s30, s30, s31
    s_add_u32 s30, s30, {W2_OFF}""")
    a("s_cmp_eq_u32 s55, 0\ns_cbranch_scc0 RP_ODD")
    for par in range(2):
        if par: a("RP_ODD:")
        for i in range(10):
            n = 2 * par + i; off = (n >> 2) * 1024 + (n & 3) * 32 - 64 * par
            a(f"ds_read_b64_tr_b16 v[{16+4*i}:{17+4*i}], v8 offset:{off}\nds_read_b64_tr_b16 v[{18+4*i}:{19+4*i}], v8 offset:{off+10240}")
        if not par: a("s_branch RP_ST")
    a("RP_ST:\ns_waitcnt lgkmcnt(0)")
    for i in range(10):
        a(f"s_add_u32 s37, s30, {(i//5)*W2_N + (i%5)*1024}\nbuffer_store_dwordx4 v[{16+4*i}:{19+4*i}], v170, s[20:23], s37 offen{SC}")
    a("s_barrier\ns_add_u32 s29, s29, 32\ns_cmp_lt_u32 s29, 74\ns_cbranch_scc1 RP_LOOP")
def prof_out(a, n):
    a(f"s_load_dwordx2 s[20:21], s[0:1], 72\ns_lshl_b32 s60, s2, 2\ns_add_u32 s60, s60, s25\ns_lshl_b32 s60, s60, 6\ns_add_u32 s60, s60, {FLAG_OFF+0x100000}\nv_mov_b32 v1, 0\ns_waitcnt lgkmcnt(0)")
    for i in range(n): a(f"v_mov_b32 v2, s{70+i}\nbuffer_store_dword v2, v1, s[20:23], s60 offen offset:{4*i}")
def k1(name, prof=False, SC=""):
    a = Asm()
    k1_setup(a)
    a("s_cmp_ge_u32 s28, 14\ns_cbranch_scc1 K1_RP")
    if DIAG == 2: a("s_mov_b32 s69, 0\nK1_AGAIN:\nv_lshrrev_b32 v201, 4, v170\ns_barrier\ns_memtime s[92:93]")
    k1_gemm_setup(a)
    a("s_cmp_eq_u32 s28, 13\ns_cbranch_scc1 K1_SP")
    k1_main(a, False, prof, SC)
    if DIAG == 2: a("s_waitcnt vmcnt(0)\ns_add_u32 s69, s69, 1\ns_cmp_lt_u32 s69, 2\ns_cbranch_scc1 K1_AGAIN")
    a("s_branch K1_DONE\nK1_SP:")
    a(f"s_mov_b32 s31, {14*256}\ns_mov_b32 s32, {26*128}\ns_add_u32 s34, s52, {14*8192}\ns_add_u32 s35, s53, {26*4096}")
    k1_main(a, True, prof, SC)
    a("s_branch K1_DONE\nK1_RP:")
    k1_repack(a, SC)
    a("K1_DONE:")
    if prof: prof_out(a, 12)
    a("K1_END:\ns_endpgm")
    return kernel_head(name) + a.text(), kernel_desc(name, 384, 256)
```

```python
from asmlib import *
import math
QKV_OFF = 0;            QKV_T = 120*1024
H_OFF = 0x800000;       H_T = 148*1024
W2_OFF = 0x1200000;     W2_N = 74*5120
FLAG_OFF = 0x1600000
WS_SZ = 0x1800000
def f2u(x):
    import struct; return struct.unpack("<I", struct.pack("<f", x))[0]
class VQ:
    def __init__(s): s.q = []
    def push(s, tag): s.q.append(tag)
    def count(s, tag): return min(63, len(s.q) - 1 - max(i for i, t in enumerate(s.q) if t == tag)) if tag in s.q else 63
    def peek(s, tag): return tag in s.q
    def wait(s, tag):
        idx = [i for i, t in enumerate(s.q) if t == tag]
        if not idx: return None
        n = len(s.q) - 1 - idx[-1]
        s.q = s.q[idx[-1]+1:]
        return min(n, 63)
def stamp(a, i, prof):
    if prof: a(f"s_memtime s[90:91]\ns_waitcnt lgkmcnt(0)\ns_sub_u32 s{70+i}, s90, s92")
import os
DIAG = int(os.environ.get("DIAG", 0))
NS = 10
XA_ = int(os.environ.get('XMAP', 8)); TLB = int(os.environ.get('TLB', 11))
PD = int(os.environ.get('PD', 2))
def wpf(lo=0, hi=4):
    o = []
    for srd, n in (("s[4:7]", 3), ("s[8:11]", 3), ("s[12:15]", 3), ("s[16:19]", 3))[lo:hi]:
        for r in range(n): o.append(f"s_add_u32 s37, s68, {r << 20}\nbuffer_load_dwordx4 a[252:255], v170, {srd}, s37 offen")
    return o
def k1_main(a, special, prof, SC, H=None):
    vq = VQ()
    vP, vF = 160, 162; vA = [164, 165, 166, 167, 168, 169]; vSt = 170; vR, vMR, vC0 = 171, 172, 173
    T0 = 174; AB = 192; WF = 64
    steps = ["P", "P", "F"] if special else ["P", "F", "F"]
    def dma(gs):
        if gs >= 30: return []
        st, sl = divmod(gs, 10); out = []
        P = steps[st] == "P"; stride = 3840 if P else 3456
        for half in range(2):
            srd = "s[8:11]" if P else ("s[12:15]" if half == 0 else "s[16:19]")
            pre = f"s_add_u32 m0, s36, {(gs % NS) * 16384 + half * 8192}\n"
            pre += f"s_add_u32 s37, s{30+st}, {128 * half + 64 * sl * stride}\n" if (P or half == 0) else "s_nop 0\n"
            v = vP if P else vF
            out.append(pre + f"buffer_load_dwordx4 v{v}, {srd}, s37 offen lds")
            out.append(f"buffer_load_dwordx4 v{v+1}, {srd}, s37 offen offset:1024 lds")
        return out
    def xd(c):
        o = []
        for rg in range(4):
            pre = f"s_add_u32 m0, s36, {c*16384 + (rg>>1)*8192}\ns_add_u32 s37, s43, {c*128}\n" if rg % 2 == 0 else ""
            o.append((pre + f"buffer_load_dwordx4 v{192+rg}, s[4:7], s37 offen" + (" offset:1024" if rg & 1 else "") + " lds", f"x{c}"))
        return o
    XA = int(os.environ.get("XA", 7))
    for o in wpf(0, 1): a(o); vq.push('t')
    for c in range(XA):
        for o, tag in xd(c): a(o); vq.push(tag)
    for o in wpf(1, 2) if TLB & 1 else []: a(o); vq.push('t')
    S = 200
    a(f"v_mov_b32 v{S}, 0\nv_mov_b32 v{S+1}, 0\nv_mov_b32 v{S+2}, 0\nv_mov_b32 v{S+3}, 0\ns_mov_b32 s38, 0x3f803f80")
    def st_ops(c, inter=[]):
        inter = list(inter); per = (len(inter) + 3) // 4
        for s in range(4*c, 4*c+4):
            for o, tag in inter[:per]: a(o); vq.push(tag)
            inter = inter[per:]
            if c < 0: continue
            for e in range(4):
                a(f"v_dot2_f32_bf16 v{S+(e&1)}, v{4*s+e}, s38, v{S+(e&1)}\nv_dot2_f32_bf16 v{S+2+(e&1)}, v{4*s+e}, v{4*s+e}, v{S+2+(e&1)}")
    for c in range(10):
        a(f"s_waitcnt vmcnt({vq.wait(f'x{c}')})")
        if c in (4, 8):
            for q in range(4): a(f"v_add_u32 v{196+q}, 0x10000, v{196+q}")
        for q in range(4): a(f"ds_read_b128 v[{16*c+4*q}:{16*c+4*q+3}], v{196+q} offset:{(c&3)*16384}")
        it_ = xd(c + XA) if c + XA < 10 else []
        for j in range(2):
            if c == max(10 - XA + j, 2 * j + 2): it_ = it_ + [(d, f"w{j}") for d in dma(2*j) + dma(2*j+1)]
        if c == TLB >> 1: it_ = it_ + [(o, 't') for o in wpf(2 if TLB & 1 else 1, 4)]
        st_ops(c - 1, it_)
        a("s_waitcnt lgkmcnt(0)")
    st_ops(9)
    a(f"""s_nop 2
    v_add_f32 v{S}, v{S}, v{S+1}
    v_add_f32 v{S+2}, v{S+2}, v{S+3}
    v_mov_b32 v{S+1}, v{S}
    v_mov_b32 v{S+3}, v{S+2}
    s_nop 1
    v_permlane32_swap_b32 v{S}, v{S+1}
    v_permlane32_swap_b32 v{S+2}, v{S+3}
    s_nop 1
    v_add_f32 v{S}, v{S}, v{S+1}
    v_add_f32 v{S+2}, v{S+2}, v{S+3}
    v_mul_f32 v{S}, {hex(f2u(-1.0/640))}, v{S}
    v_mul_f32 v{S+2}, {hex(f2u(1.0/640))}, v{S+2}
    v_fma_f32 v{S+2}, -v{S}, v{S}, v{S+2}
    v_max_f32 v{S+2}, 0, v{S+2}
    v_add_f32 v{S+2}, {hex(f2u(1e-5))}, v{S+2}
    v_sqrt_f32 v{vMR}, v{S+2}
    s_mov_b32 s41, {hex(f2u(-2*math.log2(math.e)*math.sqrt(2/math.pi)))}
    v_mov_b32 v{vC0}, s41
    v_rcp_f32 v{vR}, v{vMR}
    s_mov_b32 s41, {hex(f2u(-2*math.log2(math.e)*math.sqrt(2/math.pi)*0.044715))}""")
    for e in range(16): a(f"v_mov_b32 v{224+e}, v{S}")
    a(f"v_mul_f32 v191, s40, v{vR}")
    def lnm(kp, j):
        D = AB + 16 * (kp & 1)
        return f"v_mfma_f32_32x32x16_bf16 v[{D}:{D+15}], v[{240+4*j}:{243+4*j}], v[{8*kp+4*j}:{8*kp+4*j+3}], " + ("v[224:239]" if j == 0 else f"v[{D}:{D+15}]")
    def lnc(kp):
        D = AB + 16 * (kp & 1)
        return [f"v_cvt_pk_bf16_f32 v{8*kp+e}, v{D+2*e}, v{D+2*e+1}" for e in range(8)]
    def epi(st):
        o = []; inV = st == 1
        if steps[st] == "P":
            for t in range(4):
                for j in range(2):
                    b = AB + 16*t + 8*j if inV else T0; d = T0 + 8 + 4 * j
                    if not inV:
                        for e in range(8): o.append(f"v_accvgpr_read_b32 v{b+e}, a{16*t+8*j+e}")
                        for e in range(8): o.append(f"v_mul_f32 v{b+e}, v191, v{b+e}")
                    else:
                        for e in range(8): o.append(f"v_mul_f32 v{b+e}, v{vR}, v{b+e}")
                    for e in range(4): o.append(f"v_cvt_pk_bf16_f32 v{d+e}, v{b+2*e}, v{b+2*e+1}")
                    o.append(f"s_add_u32 s42, s{33+st}, {(2*t+j)*1024}\nbuffer_store_dwordx4 v[{d}:{d+3}], v{vSt}, s[20:23], s42 offen{SC}")
        else:
            for t in range(2):
                for j in range(2):
                    d = T0 + 8 + 4 * j
                    for q in range(2):
                        src = 16 * t + 8 * j + 4 * q; g = AB + src; u = g + 32; z = T0 + 4 * q
                        if not inV:
                            for e in range(4): o.append(f"v_accvgpr_read_b32 v{g+e}, a{src+e}")
                            for e in range(4): o.append(f"v_accvgpr_read_b32 v{u+e}, a{src+32+e}")
                        if inV:
                            for e in range(4): o.append(f"v_mul_f32 v{g+e}, v{g+e}, v{vR}")
                            for e in range(4): o.append(f"v_mul_f32 v{z+e}, v{g+e}, v{g+e}")
                            for e in range(4): o.append(f"v_fma_f32 v{z+e}, v{z+e}, s41, v{vC0}")
                            for e in range(4): o.append(f"v_mul_f32 v{z+e}, v{z+e}, v{g+e}")
                            for e in range(4): o.append(f"v_exp_f32 v{z+e}, v{z+e}\nv_mul_f32 v{g+e}, v{g+e}, v{u+e}")
                            for e in range(4): o.append(f"v_fma_f32 v{z+e}, v{z+e}, v{vMR}, v{vMR}")
                            for e in range(4): o.append(f"v_rcp_f32 v{z+e}, v{z+e}")
                            for e in range(4): o.append(f"v_mul_f32 v{g+e}, v{g+e}, v{z+e}")
                        else:
                            pr = lambda r, e: f"v[{r+e}:{r+e+1}]"
                            for e in (0, 2): o.append(f"v_pk_mul_f32 {pr(g,e)}, {pr(g,e)}, v[96:97]")
                            for e in (0, 2): o.append(f"v_pk_mul_f32 {pr(z,e)}, {pr(g,e)}, {pr(g,e)}")
                            for e in (0, 2): o.append(f"v_pk_fma_f32 {pr(z,e)}, {pr(z,e)}, v[92:93], v[94:95]")
                            for e in (0, 2): o.append(f"v_pk_mul_f32 {pr(z,e)}, {pr(z,e)}, {pr(g,e)}")
                            for e in range(4): o.append(f"v_exp_f32 v{z+e}, v{z+e}")
                            for e in (0, 2): o.append(f"v_pk_mul_f32 {pr(g,e)}, {pr(g,e)}, {pr(u,e)}")
                            for e in (0, 2): o.append(f"v_pk_fma_f32 {pr(z,e)}, {pr(z,e)}, v[98:99], v[98:99]")
                            for e in range(4): o.append(f"v_rcp_f32 v{z+e}, v{z+e}")
                            o.append("s_nop 0")
                            for e in (0, 2): o.append(f"v_pk_mul_f32 {pr(g,e)}, {pr(g,e)}, {pr(z,e)}")
                        for e in range(2): o.append(f"v_cvt_pk_bf16_f32 v{d+2*q+e}, v{g+2*e}, v{g+2*e+1}")
                    o.append(f"s_add_u32 s42, s{33+st}, {(2*t+j)*1024}\nbuffer_store_dwordx4 v[{d}:{d+3}], v{vSt}, s[20:23], s42 offen{SC}")
        return o
    def reads(gk):
        if gk >= 120: return []
        gs, ks = divmod(gk, 4); o = []
        for t in range(4):
            W = WF + 16 * (gk % (PD + 1)) + 4 * t
            for j in range(2):
                off = (gs % NS) * 16384 + (t >> 1) * 8192 + ks * 2048 + j * 512
                o.append(f"ds_read_b64_tr_b16 {'v' if DIAG==4 else 'a'}[{W+2*j+(144 if DIAG==4 else 0)}:{W+2*j+1+(144 if DIAG==4 else 0)}], v{vA[(t&1) + 2*(off>>16)]} offset:{off & 0xffff}")
        return o
    a("s_nop 0"); a(lnm(0, 0)); a(lnm(0, 1))
    a(f"s_waitcnt vmcnt({vq.wait('w0')})\ns_barrier")
    for g in range(PD):
        for o in reads(g): a(o)
    for o in lnc(0): a(o)
    stamp(a, 0, prof)
    issued = 2; pend = []
    if H: H.start(a)
    for st in range(3):
        fill = epi(st - 1) if st > 0 else []
        nf = len(fill); done = 0
        for k in range(40):
            gk = 40 * st + k; ss = gk // 8
            lg = 8 * min(PD - 1, 119 - gk)
            a(f"s_waitcnt lgkmcnt({lg})")
            rd = reads(gk + PD)
            kp = k // 2 + 1; ln = [[], [], [], []]
            if st == 0 and kp < 20: ln = [[], [lnm(kp, 0)], [], [lnm(kp, 1)]] if k % 2 == 0 else [[], [], lnc(kp)[:4], lnc(kp)[4:] + ['s_nop 0']]
            for t in range(4):
                W = WF + 16 * (gk % (PD + 1)) + 4 * t
                acc = f"v[{AB+16*t}:{AB+16*t+15}]" if st == 1 else f"a[{16*t}:{16*t+15}]"
                a(f"v_mfma_f32_32x32x16_bf16 {acc}, a[{W}:{W+3}], v[{4*k}:{4*k+3}], {'0' if k == 0 else acc}")
                if t == 0 and k % 8 == 0:
                    fl = H and ss == (12 if special else 10)
                    n = vq.wait("st") if fl else None
                    n = vq.wait(f"w{ss+1}") if vq.peek(f"w{ss+1}") else n
                    if n is not None: a(f"s_waitcnt vmcnt({n})")
                    if H and ss == 10: H.w2chk(a, vq)
                    if ss < 14 or fl: a("s_barrier")
                    assert not pend or ss > 11
                    if fl: H.flag(a, vq)
                    if H and ss == 8: H.w2a(a, vq)
                    if H and ss == 11: pend = H.w2b(a, vq)
                    for _ in range(2):
                        if issued <= ss + 4 and issued < 15:
                            pend += [(d, f"w{issued}") for d in dma(2 * issued) + dma(2 * issued + 1)]; issued += 1
                    rate = len(pend) // 8 if ss < 11 else (2 if ss == 11 else 1)
                if H and gk == 116 and t == 2: H.pre(a, vq)
                if t < 2:
                    for o in rd[4*t:4*t+4]: a(o)
                for o in ln[t]: a(o)
                if pend and (t == 2 or (t == 3 and rate == 2)):
                    o, tag = pend.pop(0); a(o); vq.push(tag)
                m = 8 * k + [1, 2, 5, 8][t]
                tgt = min(nf, max(0, (m - 8) * nf // (300 if steps[st-1] == 'F' else (170 if st == 1 else 85))))
                while done < tgt:
                    a(fill[done])
                    if "buffer_store" in fill[done]: vq.push("st")
                    done += 1
        assert done == nf
        stamp(a, [1, 10, 2][st], prof)
    inter = H.post(a, vq) if H else []
    a(f"v_mov_b32 v92, s41\nv_mov_b32 v93, s41\nv_mov_b32 v94, v{vC0}\nv_mov_b32 v95, v{vC0}\nv_mov_b32 v96, v{vR}\nv_mov_b32 v97, v{vR}\nv_mov_b32 v98, v{vMR}\nv_mov_b32 v99, v{vMR}\ns_nop 3")
    for n, o in enumerate(epi(2)):
        a(o)
        if n % 7 == 0 and inter:
            x, tags = inter.pop(0); a(x)
            for tg in tags: vq.push(tg)
        if "buffer_store" in o: vq.push("st")
    assert not inter
    stamp(a, 3, prof)
    return vq

def k1_setup(a):
    a(f"""s_cmp_ge_u32 s2, 256
    s_cbranch_scc1 K1_END
    s_memtime s[92:93]
    s_load_dwordx2 s[4:5], s[0:1], 0
    s_load_dwordx2 s[8:9], s[0:1], 8
    s_load_dwordx2 s[12:13], s[0:1], 32
    s_load_dwordx2 s[16:17], s[0:1], 40
    s_load_dwordx2 s[20:21], s[0:1], 72
    s_load_dwordx2 s[44:45], s[0:1], 48
    s_load_dwordx2 s[48:49], s[0:1], 16
    s_mov_b32 s6, {2048*1280}
    s_mov_b32 s7, 0x20000
    s_mov_b32 s10, {640*3840}
    s_mov_b32 s11, 0x20000
    s_mov_b32 s14, {640*3456}
    s_mov_b32 s15, 0x20000
    s_mov_b32 s18, {640*3456}
    s_mov_b32 s19, 0x20000
    s_mov_b32 s22, {WS_SZ}
    s_mov_b32 s23, 0x20000
    s_mov_b32 s46, {1728*1280}
    s_mov_b32 s47, 0x20000
    s_mov_b32 s50, {640*1280}
    s_mov_b32 s51, 0x20000
    v_lshrrev_b32 v200, 6, v0
    v_and_b32 v201, 63, v0
    s_and_b32 s24, s2, 7
    v_readfirstlane_b32 s25, v200
    s_lshr_b32 s26, s2, 3
    s_and_b32 s27, s24, {16//XA_-1}
    s_lshl_b32 s27, s27, {XA_.bit_length()-1}
    s_and_b32 s28, s26, {XA_-1}
    s_add_u32 s27, s27, s28
    s_lshr_b32 s28, s24, {(16//XA_).bit_length()-1}
    s_lshl_b32 s28, s28, {(32//XA_).bit_length()-1}
    s_lshr_b32 s29, s26, {XA_.bit_length()-1}
    s_add_u32 s28, s28, s29
    v_lshlrev_b32 v170, 4, v201
    s_lshl_b32 s68, s2, 2
    s_add_u32 s68, s68, s25
    s_lshl_b32 s68, s68, 10""")
def k1_gemm_setup(a):
    a(f"""v_lshrrev_b32 v202, 3, v201
    v_and_b32 v203, 7, v201
    v_lshrrev_b32 v204, 1, v202
    v_xor_b32 v207, v203, v204
    v_lshlrev_b32 v207, 4, v207
    v_mul_u32_u24 v192, 1280, v202
    v_add_u32 v192, v192, v207
    v_add_u32 v193, {8*1280-1024}, v192
    v_xor_b32 v194, 64, v192
    v_add_u32 v194, {16*1280}, v194
    v_add_u32 v195, {8*1280-1024}, v194
    s_lshl_b32 s29, s27, 2
    s_add_u32 s29, s29, s25
    s_mul_i32 s43, s29, {32*1280}
    s_lshl_b32 s36, s25, 11
    v_and_b32 v204, 1, v204
    v_lshlrev_b32 v204, 2, v204
    v_xor_b32 v203, v203, v204
    v_lshlrev_b32 v203, 4, v203
    s_lshl_b32 s30, s25, 4
    v_add_u32 v202, s30, v202
    v_mul_u32_u24 v160, 3840, v202
    v_mul_u32_u24 v162, 3456, v202
    v_add_u32 v160, v160, v203
    v_add_u32 v162, v162, v203
    v_add_u32 v161, {8*3840-1024}, v160
    v_add_u32 v163, {8*3456-1024}, v162
    v_and_b32 v202, 3, v201
    v_bfe_u32 v203, v201, 2, 2
    v_bfe_u32 v204, v201, 4, 1
    v_lshrrev_b32 v205, 5, v201
    v_lshlrev_b32 v206, 10, v205
    v_lshl_add_u32 v206, v203, 7, v206
    v_lshl_add_u32 v206, v204, 5, v206
    v_lshl_add_u32 v206, v202, 3, v206
    v_lshrrev_b32 v203, 1, v203
    v_lshlrev_b32 v203, 6, v203
    v_add_u32 v164, v206, v203
    {"v_lshlrev_b32 v164, 3, v201" if DIAG == 3 else ""}
    v_xor_b32 v165, 64, v164
    v_add_u32 v166, 0x10000, v164
    v_add_u32 v167, 0x10000, v165
    v_add_u32 v168, 0x20000, v164
    v_add_u32 v169, 0x20000, v165
    v_bfe_u32 v202, v201, 1, 2
    v_lshl_or_b32 v202, v204, 2, v202
    v_xor_b32 v202, v202, v205
    v_lshlrev_b32 v202, 4, v202
    v_lshl_add_u32 v202, v204, 13, v202
    v_and_b32 v203, 15, v201
    v_lshl_add_u32 v202, v203, 7, v202
    v_add_u32 v196, s36, v202
    v_xor_b32 v197, 32, v196
    v_xor_b32 v198, 64, v196
    v_xor_b32 v199, 96, v196
    v_bfe_u32 v202, v201, 2, 1
    v_bfe_u32 v203, v201, 3, 1
    v_bfe_u32 v206, v201, 1, 1
    v_lshl_add_u32 v203, v203, 1, v206
    v_lshl_add_u32 v203, v204, 2, v203
    v_and_b32 v206, 1, v201
    v_lshlrev_b32 v206, 4, v206
    v_mov_b32 v207, 0x3f80
    v_lshlrev_b32 v206, v206, v207
    v_cmp_eq_u32 vcc, v202, v205
    v_mov_b32 v207, 0
    s_nop 0
    v_cndmask_b32 v206, v207, v206, vcc
    v_cmp_eq_u32 vcc, 0, v203
    s_nop 1
    v_cndmask_b32 v240, v207, v206, vcc
    v_cmp_eq_u32 vcc, 1, v203
    s_nop 1
    v_cndmask_b32 v241, v207, v206, vcc
    v_cmp_eq_u32 vcc, 2, v203
    s_nop 1
    v_cndmask_b32 v242, v207, v206, vcc
    v_cmp_eq_u32 vcc, 3, v203
    s_nop 1
    v_cndmask_b32 v243, v207, v206, vcc
    v_cmp_eq_u32 vcc, 4, v203
    s_nop 1
    v_cndmask_b32 v244, v207, v206, vcc
    v_cmp_eq_u32 vcc, 5, v203
    s_nop 1
    v_cndmask_b32 v245, v207, v206, vcc
    v_cmp_eq_u32 vcc, 6, v203
    s_nop 1
    v_cndmask_b32 v246, v207, v206, vcc
    v_cmp_eq_u32 vcc, 7, v203
    s_nop 1
    v_cndmask_b32 v247, v207, v206, vcc
    s_mul_i32 s52, s29, {QKV_T}
    s_mul_i32 s53, s29, {H_T}
    s_add_u32 s53, s53, {H_OFF}
    s_lshl_b32 s30, s28, 8
    s_lshl_b32 s33, s28, 13
    s_add_u32 s33, s33, s52
    s_cmp_lt_u32 s28, 5
    s_cselect_b32 s40, {hex(f2u(20**-0.5*math.log2(math.e)))}, 1.0
    s_lshl_b32 s31, s28, 8
    s_add_u32 s32, s31, 128
    s_lshl_b32 s34, s28, 13
    s_add_u32 s34, s34, s53
    s_add_u32 s35, s34, 4096
    s_waitcnt lgkmcnt(0)""")
def k1_repack(a, SC):
    a(f"""s_sub_u32 s29, s28, 14
    s_lshl_b32 s29, s29, 4
    s_add_u32 s29, s29, s27
    v_lshrrev_b32 v1, 3, v201
    v_and_b32 v2, 7, v201
    v_mul_u32_u24 v3, 1280, v1
    v_lshl_add_u32 v3, v2, 4, v3
    v_lshrrev_b32 v4, 2, v1
    v_mul_u32_u24 v4, {36*1280}, v4
    v_add_u32 v4, v4, v3
    v_lshrrev_b32 v5, 5, v201
    v_mul_u32_u24 v5, 20480, v5
    v_bfe_u32 v6, v201, 2, 3
    v_lshl_add_u32 v5, v6, 7, v5
    v_and_b32 v6, 3, v201
    v_lshl_add_u32 v5, v6, 3, v5
    s_mul_i32 s36, s25, 10240
    s_lshr_b32 s54, s25, 1
    s_and_b32 s55, s25, 1
    s_waitcnt lgkmcnt(0)
    RP_LOOP:
    s_cmp_ge_u32 s29, 54
    s_cbranch_scc1 RP_O
    s_lshl_b32 s30, s29, 5
    s_lshl_b32 s31, s25, 3
    s_add_u32 s30, s30, s31
    s_mul_i32 s30, s30, 1280""")
    for cb in range(10): a(f"s_add_u32 m0, s36, {cb*1024}\ns_add_u32 s37, s30, {cb*128}\nbuffer_load_dwordx4 v3, s[44:47], s37 offen lds")
    a(f"""s_branch RP_T
    RP_O:
    s_sub_u32 s30, s29, 54
    s_lshl_b32 s30, s30, 1
    s_add_u32 s30, s30, s54
    s_mul_i32 s31, s30, 52429
    s_lshr_b32 s31, s31, 18
    s_mul_i32 s32, s31, 5
    s_sub_u32 s32, s30, s32
    s_mul_i32 s31, s31, 80
    s_cmp_eq_u32 s32, 4
    s_cbranch_scc1 RP_L
    s_mul_i32 s32, s32, 20
    s_add_u32 s31, s31, s32
    s_lshl_b32 s32, s55, 3
    s_add_u32 s31, s31, s32
    v_mov_b32 v7, v3
    s_branch RP_O2
    RP_L:
    s_mul_i32 s32, s55, 20
    s_add_u32 s31, s31, s32
    s_add_u32 s31, s31, 16
    v_mov_b32 v7, v4
    RP_O2:
    s_mul_i32 s30, s31, 1280""")
    for cb in range(10): a(f"s_add_u32 m0, s36, {cb*1024}\ns_add_u32 s37, s30, {cb*128}\nbuffer_load_dwordx4 v7, s[48:51], s37 offen lds")
    a(f"""RP_T:
    s_waitcnt vmcnt(0)
    s_barrier
    s_mul_i32 s30, s25, 2560
    s_and_b32 s31, s25, 1
    s_mul_i32 s31, s31, {64-512}
    s_add_u32 s30, s30, s31
    v_add_u32 v8, s30, v5
    s_mul_i32 s30, s25, {2*W2_N}
    s_mul_i32 s31, s29, 5120
    s_add_u32 s30, s30, s31
    s_add_u32 s30, s30, {W2_OFF}""")
    a("s_cmp_eq_u32 s55, 0\ns_cbranch_scc0 RP_ODD")
    for par in range(2):
        if par: a("RP_ODD:")
        for i in range(10):
            n = 2 * par + i; off = (n >> 2) * 1024 + (n & 3) * 32 - 64 * par
            a(f"ds_read_b64_tr_b16 v[{16+4*i}:{17+4*i}], v8 offset:{off}\nds_read_b64_tr_b16 v[{18+4*i}:{19+4*i}], v8 offset:{off+10240}")
        if not par: a("s_branch RP_ST")
    a("RP_ST:\ns_waitcnt lgkmcnt(0)")
    for i in range(10):
        a(f"s_add_u32 s37, s30, {(i//5)*W2_N + (i%5)*1024}\nbuffer_store_dwordx4 v[{16+4*i}:{19+4*i}], v170, s[20:23], s37 offen{SC}")
    a("s_barrier\ns_add_u32 s29, s29, 32\ns_cmp_lt_u32 s29, 74\ns_cbranch_scc1 RP_LOOP")
def prof_out(a, n):
    a(f"s_load_dwordx2 s[20:21], s[0:1], 72\ns_lshl_b32 s60, s2, 2\ns_add_u32 s60, s60, s25\ns_lshl_b32 s60, s60, 6\ns_add_u32 s60, s60, {FLAG_OFF+0x100000}\nv_mov_b32 v1, 0\ns_waitcnt lgkmcnt(0)")
    for i in range(n): a(f"v_mov_b32 v2, s{70+i}\nbuffer_store_dword v2, v1, s[20:23], s60 offen offset:{4*i}")
def k1(name, prof=False, SC=""):
    a = Asm()
    k1_setup(a)
    a("s_cmp_ge_u32 s28, 14\ns_cbranch_scc1 K1_RP")
    if DIAG == 2: a("s_mov_b32 s69, 0\nK1_AGAIN:\nv_lshrrev_b32 v201, 4, v170\ns_barrier\ns_memtime s[92:93]")
    k1_gemm_setup(a)
    a("s_cmp_eq_u32 s28, 13\ns_cbranch_scc1 K1_SP")
    k1_main(a, False, prof, SC)
    if DIAG == 2: a("s_waitcnt vmcnt(0)\ns_add_u32 s69, s69, 1\ns_cmp_lt_u32 s69, 2\ns_cbranch_scc1 K1_AGAIN")
    a("s_branch K1_DONE\nK1_SP:")
    a(f"s_mov_b32 s31, {14*256}\ns_mov_b32 s32, {26*128}\ns_add_u32 s34, s52, {14*8192}\ns_add_u32 s35, s53, {26*4096}")
    k1_main(a, True, prof, SC)
    a("s_branch K1_DONE\nK1_RP:")
    k1_repack(a, SC)
    a("K1_DONE:")
    if prof: prof_out(a, 12)
    a("K1_END:\ns_endpgm")
    return kernel_head(name) + a.text(), kernel_desc(name, 384, 256)
```

```python
from asmlib import *
from k1 import *
import k1
KT, VT, VB = 3456, 3744, 41472
SC = " sc1"
SLP = int(os.environ.get("SLP", 4)); NOPF = int(os.environ.get("NOPF", 1)); STS = "" if os.environ.get("PLAINST") else SC
MSK = [12, 14, 16, 18] + list(range(28, 52, 2))
uid = [0]
def poll_issue(a, vq, vdst, vaddr, tag):
    a(f"buffer_load_dword v{vdst}, v{vaddr}, s[20:23], 0 offen sc1"); vq.push(tag)
def poll_check(a, vq, vdst, vaddr, vlim, need, tag):
    uid[0] += 1; u = uid[0]
    a(f"""s_cmp_lg_u32 s25, 0
    s_cbranch_scc1 PD{u}
    s_waitcnt vmcnt({vq.count(tag)})
    s_mov_b32 s88, 0
    s_add_u32 s83, s98, {need}
    PL{u}:
    v_subrev_u32 v{vdst}, s83, v{vdst}
    v_cmp_lt_u32 vcc, v{vlim}, v{vdst}
    s_cbranch_vccz PD{u}
    s_add_u32 s88, s88, 1
    s_cmp_gt_u32 s88, 0x40000
    s_cbranch_scc1 PD{u}
    s_sleep {SLP}
    buffer_load_dword v{vdst}, v{vaddr}, s[20:23], 0 offen sc1
    s_waitcnt vmcnt(0)
    s_branch PL{u}
    PD{u}:""")
def flag(a, vq, val, v, w2=False):
    uid[0] += 1; u = uid[0]
    a(f"s_cmp_lg_u32 s25, 0\ns_cbranch_scc1 FL{u}\ns_add_u32 s83, s98, {val}\nv_mov_b32 v{v}, s83")
    if w2: a(f"v_lshlrev_b32 v{v+1}, 8, v170\ns_mov_b64 exec, 0xff\nbuffer_store_dword v{v}, v{v+1}, s[20:23], s82 offen sc1")
    else: a(f"v_mov_b32 v{v+1}, 0\ns_mov_b64 exec, 1\nbuffer_store_dword v{v}, v{v+1}, s[20:23], s89 offen sc1")
    a(f"s_mov_b64 exec, -1\nFL{u}:")
def nonce(a):
    uid[0] += 1; u = uid[0]
    a(f"s_cmp_lg_u32 s25, 0\ns_cbranch_scc1 NO{u}\ns_or_b32 s98, s100, 1\ns_mov_b32 s99, 0\ns_mov_b32 s101, s98\ns_atomic_cmpswap s[98:99], s[84:85], 0 glc\nNO{u}:")
def nonce_fin(a):
    a("s_waitcnt lgkmcnt(0)\ns_cmp_eq_u32 s98, 0\ns_cselect_b32 s98, s101, s98")
def pollreg(a, v, vL, srow, nrows, ncols, need):
    a(f"""v_lshrrev_b32 v{v+2}, 4, v{vL}
    v_sub_u32 v{v}, {srow}, v{v+2}
    v_cmp_gt_u32 vcc, {nrows}, v{v+2}
    v_cmp_le_i32 s[94:95], 0, v{v}
    v_and_b32 v{v+2}, 15, v{vL}
    s_and_b64 s[94:95], vcc, s[94:95]
    v_cmp_gt_u32 vcc, {ncols}, v{v+2}
    v_lshlrev_b32 v{v}, 12, v{v}
    v_lshl_add_u32 v{v}, v{v+2}, 2, v{v}
    s_and_b64 vcc, vcc, s[94:95]
    v_add_u32 v{v}, s81, v{v}
    v_mov_b32 v{v+1}, -1
    v_mov_b32 v{v+2}, 0x7ff00000
    v_cndmask_b32 v{v+1}, v{v+1}, {3-need}, vcc
    v_cndmask_b32 v{v}, v{v+2}, v{v}, vcc""")
def stage_issue(a, vq, vL16):
    a(f"""s_mul_i32 s62, s28, 5
    s_lshr_b32 s62, s62, 1
    s_lshl_b32 s63, s27, 2
    s_add_u32 s63, s63, s25
    s_mul_i32 s64, s63, {QKV_T}
    s_lshl_b32 s65, s62, 10
    s_add_u32 s64, s64, s65
    s_mov_b32 s61, s28""")
    out = []
    for i in range(3):
        for kv in range(2):
            pre = f"s_add_u32 s65, s64, {((4*i-8)*QKV_T + (40+40*kv)*1024) & 0xffffffff}\n"
            if i < 2: pre += f"s_cmp_lt_u32 s63, {8-4*i}\ns_cselect_b32 s65, 0x7ff00000, s65\n"
            for r in range(3):
                d = 24*i + 12*kv + 4*r
                out.append((pre + f"buffer_load_dwordx4 v[{d}:{d+3}], v{vL16}, s[20:23], s65 offen offset:{1024*r}{SC}", [f"kv{i}"])); pre = ""
    x = f"s_and_b32 s66, s61, 1\nv_and_b32 v84, 0x1ff, v{vL16}\nv_lshrrev_b32 v85, 9, v{vL16}\n"
    uid[0] += 1
    for par in range(2):
        x += f"s_cmp_eq_u32 s66, {par}\ns_cbranch_scc0 AQ{par}_{uid[0]}\n"
        for hd in range(2):
            gb = 2*par + 5*hd; e = gb + (gb & 1); sg = gb if gb & 1 else gb + 4
            ad = lambda g: (g >> 2) * 1024 + (g & 1) * 512 + ((g >> 1) & 1) * 8
            x += f"v_mul_u32_u24 v86, {ad(e+2)-ad(e)}, v85\nv_add_u32 v86, v86, v84\n"
            for y, (vv, of) in enumerate([(86, ad(e)), (86, ad(e) + 512), (84, ad(sg))]):
                x += f"buffer_load_dwordx2 v[{72+6*hd+2*y}:{73+6*hd+2*y}], v{vv}, s[20:23], s64 offen offset:{of}{SC}\n"
        x += f"AQ{par}_{uid[0]}:\n"
    out.append((x, ["kv2"] * 6))
    return out
OC = int(os.environ.get('OC', 9)); NT = 9; AC = 144
def tload(a, vq, it):
    ks = 4 * it if it < 14 else 54 + 4 * (it - 14); b = 16 * (it % NT)
    a(f"s_add_u32 s53, s52, {ks*2048}")
    if it == 13: a("s_cmp_ge_u32 s25, 2\ns_cselect_b32 s53, 0x7ff00000, s53")
    for s in range(4):
        a(f"buffer_load_dwordx4 v[{b+4*s}:{b+4*s+3}], v{238+(s>>1)}, s[20:23], s53 offen offset:{256*(s&1)}{SC}"); vq.push(f"g{it}")
def wsl(it):
    j = it % 12
    return 112 + 20 * j if j < 7 else 20 * (j - 7)
def wload(it, v=242):
    ks = 4 * it if it < 14 else 54 + 4 * (it - 14); b = wsl(it); o = []
    for s in range(5):
        pre = f"s_add_u32 s67, s57, {ks*5120 + (4096 if s == 4 else 0)}\n" if s in (0, 4) else ""
        o.append(pre + f"buffer_load_dwordx4 a[{b+4*s}:{b+3+4*s}], v{v}, s[20:23], s67 offen offset:{1024*(s&3)}{SC}")
    return o
def attention(a, vq0, prof, vL):
    vq = vq0
    t = 246; QR = 226; vK, vV = 243, 244; vK1 = t + 4; Z = t + 9
    KB = 144; PB = 168; VF = 184; O = 200; MB = 216; M0 = 88
    a(f"""v_and_b32 v{t}, 31, v{vL}
    v_lshrrev_b32 v{t+1}, 5, v{vL}
    v_mul_u32_u24 v242, 288, v{t+1}
    v_lshl_add_u32 v242, v{t}, 3, v242
    s_mul_i32 s67, s25, {KT}
    s_mul_i32 s68, s66, {2*288}
    s_add_u32 s69, s67, s68
    v_mul_u32_u24 v{vK}, 576, v{t+1}
    v_lshl_add_u32 v{vK}, v{t}, 3, v{vK}
    v_add_u32 v{vK}, s69, v{vK}
    v_lshlrev_b32 v{t+4}, 3, v{t}
    v_add_u32 v{t+4}, s69, v{t+4}
    v_add_u32 v{t+5}, s67, v242
    s_mul_i32 s67, s25, {VT}
    s_add_u32 s67, s67, {VB}
    v_add_u32 v{t+6}, s67, v242
    v_lshlrev_b32 v{t+7}, 2, v{vL}
    v_add_u32 v{t+7}, s67, v{t+7}
    v_mov_b32 v{t+8}, 0x3f803f80
    v_and_b32 v{t+2}, 3, v{vL}
    v_bfe_u32 v{t+3}, v{vL}, 4, 1
    v_lshl_add_u32 v{t+2}, v{t+3}, 2, v{t+2}
    v_mul_u32_u24 v{vV}, 288, v{t+2}
    v_add_u32 v{vV}, s68, v{vV}
    v_add_u32 v{vV+1}, {5*288}, v{vV}
    v_cmp_lt_u32 vcc, 4, v{t+2}
    v_mov_b32 v{t+3}, {12*288}
    v_bfe_u32 v{t+2}, v{vL}, 2, 2
    v_cndmask_b32 v{vV}, v{vV}, v{t+3}, vcc
    v_cndmask_b32 v{vV+1}, v{vV+1}, v{t+3}, vcc
    v_lshlrev_b32 v{t+2}, 3, v{t+2}
    v_lshl_add_u32 v{t+2}, v{t+1}, 5, v{t+2}
    v_add_u32 v{t+2}, s67, v{t+2}
    v_add_u32 v{vV}, v{vV}, v{t+2}
    v_add_u32 v{vV+1}, v{vV+1}, v{t+2}
    v_lshlrev_b32 v242, 4, v{vL}
    v_lshlrev_b32 v{t+2}, 2, v{t+1}
    v_sub_u32 v{t+2}, v{t}, v{t+2}
    v_mov_b32 v{Z}, 0
    v_cmp_gt_u32 s[58:59], 32, v{vL}
    v_mov_b32 v220, 0x3f80
    v_cndmask_b32 v222, v{Z}, v{t+8}, s[58:59]
    v_cndmask_b32 v223, v{Z}, v220, s[58:59]
    v_mov_b32 v224, 0
    v_mov_b32 v225, 0
    v_mov_b32 v{MB+2}, 0
    v_mov_b32 v{MB+3}, 0
    s_barrier""")
    for i in range(3): a(f"ds_write_b32 v{t+7}, v{t+8} offset:{4*i*VT + 12*288}")
    for r in range(16): a(f"v_cmp_gt_i32 s[{MSK[r]}:{MSK[r]+1}], {8*(r>>2)+(r&3)}, v{t+2}")
    for i in range(3):
        a(f"s_waitcnt vmcnt({vq.wait(f'kv{i}')})")
        for kv in range(2):
            for r in range(3):
                d = 24*i + 12*kv + 4*r; base = 4*i*(VT if kv else KT) + 4*r*288
                a(f"ds_write_b64 v{t+5+kv}, v[{d}:{d+1}] offset:{base}\nds_write_b64 v{t+5+kv}, v[{d+2}:{d+3}] offset:{base+576}")
    for hd in range(2):
        for x in range(4): a(f"v_mov_b32 v{QR+8*hd+x}, v{72+6*hd+x}")
        a(f"v_cndmask_b32 v{QR+8*hd+4}, v{Z}, v{76+6*hd}, s[58:59]\nv_cndmask_b32 v{QR+8*hd+5}, v{Z}, v{77+6*hd}, s[58:59]\nv_mov_b32 v{QR+8*hd+6}, 0\nv_mov_b32 v{QR+8*hd+7}, 0")
    for b in range(3): a(f"v_mov_b32 v{KB+8*b+6}, 0\nv_mov_b32 v{KB+8*b+7}, 0")
    n = vq.wait("st")
    a(f"s_waitcnt lgkmcnt(0)" + (f" vmcnt({n})" if n is not None else "") + "\ns_barrier")
    flag(a, vq, 2, t)
    stamp(a, 4, prof)
    a("s_cmp_lt_u32 s27, 2\ns_cbranch_scc1 ATT_SLOW")
    import copy
    q2 = copy.deepcopy(vq)
    att_body(a, vq, prof, False); a("s_branch ATT_END\nATT_SLOW:"); att_body(a, q2, prof, True); a("ATT_END:")
def att_body(a, vq, prof, slow):
    t = 246; QR = 226; vK, vV = 243, 244; vK1 = t + 4; Z = t + 9
    KB = 144; PB = 168; VF = 184; O = 200; MB = 216
    wq = [(o, f"g{it}") for it in range(7, 12) for o in wload(it)]
    def wpre(n):
        for _ in range(n):
            if wq: o, tag = wq.pop(0); a(o); vq.push(tag)
    order = [8, 0, 1, 2, 3, 4, 5, 6, 7]
    lg = [0]
    def kread(hd, x):
        if x > 8: return
        i = order[x]; b = KB + 8 * (x % 3); e = 6 * hd; sg = 5 if hd else 4
        a(f"ds_read_b64 v[{b}:{b+1}], v{vK} offset:{i*KT + e*288}\nds_read_b64 v[{b+2}:{b+3}], v{vK} offset:{i*KT + e*288 + 288}\nds_read_b64 v[{b+4}:{b+5}], v{vK1} offset:{i*KT + sg*288}")
    def qk(hd, x, half):
        S = 16 * order[x]; b = KB + 8 * (x % 3) + 4 * half; q = QR + 8 * hd + 4 * half
        a(f"v_mfma_f32_32x32x16_bf16 v[{S}:{S+15}], v[{b}:{b+3}], v[{q}:{q+3}], {'0' if half == 0 else f'v[{S}:{S+15}]'}")
    def mx(hd, i):
        S = 16 * i; o = []
        if slow: o.append(f"s_cmp_ge_u32 s63, {8-i}\ns_cbranch_scc1 AV{hd}_{i}\n" + "".join(f"v_mov_b32 v{S+r}, 0xf149f2ca\n" for r in range(16)) + f"AV{hd}_{i}:")
        if i == 0: o += [f"v_cndmask_b32 v{r}, v{128+r}, v{r}, s[{MSK[r]}:{MSK[r]+1}]" for r in range(16)]
        for r in range(0, 16, 2):
            m = t + (r >> 1) % 2
            o.append(f"v_max3_f32 v{m}, v{S+r}, v{S+r+1}, v{m}" if i or r > 2 else f"v_max_f32 v{m}, v{S+r}, v{S+r+1}")
        return o
    def vread(hd, i, buf):
        for j in range(2):
            for jj in range(2):
                f = buf + 4 * j + 2 * jj
                a(f"ds_read_b64_tr_b16 v[{f}:{f+1}], v{vV+hd} offset:{i*VT + (16*j+8*jj)*8}")
    def mred():
        a(f"""v_max_f32 v{t}, v{t}, v{t+1}
        v_mov_b32 v{t+1}, v{t}
        s_nop 1
        v_permlane32_swap_b32 v{t}, v{t+1}
        s_nop 1
        v_max_f32 v{t}, v{t}, v{t+1}
        v_and_b32 v{t+1}, 0xffff0000, v{t}
        v_sub_f32 v{t}, v{t}, v{t+1}
        v_and_b32 v{t+2}, 0xffff0000, v{t}
        v_sub_f32 v{t}, v{t}, v{t+2}
        v_cvt_pk_bf16_f32 v{t+1}, -v{t+1}, -v{t+2}
        v_cvt_pk_bf16_f32 v{t+2}, -v{t}, v{Z}
        v_cndmask_b32 v{MB}, v{Z}, v{t+1}, s[58:59]
        v_cndmask_b32 v{MB+1}, v{Z}, v{t+2}, s[58:59]
        s_nop 1""")
    sub = lambda i: a(f"v_mfma_f32_32x32x16_bf16 v[{16*i}:{16*i+15}], v[222:225], v[{MB}:{MB+3}], v[{16*i}:{16*i+15}]")
    def pv(vb, pb, first):
        a(f"v_mfma_f32_32x32x16_bf16 v[{O}:{O+15}], v[{vb}:{vb+3}], v[{pb}:{pb+3}], {'0' if first else f'v[{O}:{O+15}]'}")
    def oepi(hd):
        a(f"""v_mov_b32 v220, v{O+8}
        v_mov_b32 v221, v{O+8}
        s_lshr_b32 s60, s61, 1
        s_mul_i32 s60, s60, 5
        v_permlane32_swap_b32 v220, v221
        s_lshl_b32 s68, s66, 1
        s_add_u32 s68, s68, s60
        v_rcp_f32 v221, v221
        s_mul_i32 s69, s63, {H_T}
        s_add_u32 s69, s69, {H_OFF + 108*1024}""")
        for r in range(12): a(f"v_mul_f32 v{O+r}, v{O+r}, v221")
        for r in range(4): a(f"v_cvt_pk_bf16_f32 v{O+12+r}, v{O+2*r}, v{O+2*r+1}")
        for r in range(2): a(f"v_cvt_pk_bf16_f32 v{QR+2*hd+r}, v{O+8+2*r}, v{O+9+2*r}")
        a(f"s_lshl_b32 s68, s68, 10\ns_add_u32 s68, s68, s69\nbuffer_store_dwordx4 v[{O+12}:{O+15}], v242, s[20:23], s68 offen offset:{1024*hd}{SC}"); vq.push("o")
    kread(0, 0); kread(0, 1)
    for x in range(9):
        a(f"s_waitcnt lgkmcnt({3 if x < 8 else 0})"); qk(0, x, 0); qk(0, x, 1); kread(0, x + 2); wpre(x & 1)
        if x >= 3:
            for o in mx(0, x - 3): a(o)
    for hd in range(2):
        vread(hd, 8, 128); vread(hd, 0, VF)
        for o in mx(hd, 6) + mx(hd, 7): a(o)
        mred(); sub(0); sub(1)
        if hd == 1: oepi(0); poll_issue(a, vq, t + 5, t + 6, "ph")
        else:
            a(f"v_lshrrev_b32 v220, 4, v242\ns_lshl_b32 s60, s24, 1\ns_bfe_u32 s62, s26, 0x10001\ns_add_u32 s62, s62, s60"); pollreg(a, t + 6, 220, "s62", 1, 14, 2); kread(1, 0); kread(1, 1); kread(1, 2)
        for i in range(8):
            S = 16 * i; P = PB + 8 * (i & 1); fill = mx(1, i - 3) if (hd == 0 and i >= 3) else []
            for r in range(16):
                a(f"v_exp_f32 v{S+r}, v{S+r}")
                if r == 1 and i + 2 < 8: sub(i + 2)
                if i == 1:
                    if r == 2: a("s_waitcnt lgkmcnt(0)"); pv(128, 136, True)
                    if r == 4: pv(132, 140, False)
                elif r == 4 and i: a("s_waitcnt lgkmcnt(0)")
                if r == 6 and i: pv(VF + 8 * ((i-1) & 1), PB + 8 * ((i-1) & 1), False)
                if r == 9 and i: pv(VF + 8 * ((i-1) & 1) + 4, PB + 8 * ((i-1) & 1) + 4, False)
                if r == 10 and i < 7: vread(hd, i + 1, VF + 8 * ((i+1) & 1))
                if hd == 0 and i >= 1:
                    x = i - 1 if i >= 2 else None
                    if i == 2 and r in (0, 3): qk(1, 0, r // 3)
                    if x and r in (12, 14): qk(1, x, (r - 12) // 2)
                    if r == 15 and i >= 2: kread(1, i + 1)
                if r in (3, 8, 13) and hd == 0: wpre(1)
                if hd == 1 and i == 2 and r == 0:
                    poll_check(a, vq, 251, 252, 253, 2, "ph")
                    a(f"""s_barrier
                    v_bfe_u32 v238, v242, 4, 4
                    v_lshrrev_b32 v239, 8, v242
                    v_lshlrev_b32 v238, 4, v238
                    v_lshl_add_u32 v238, v239, 9, v238
                    v_add_u32 v239, {H_T}, v238
                    s_lshl_b32 s60, s24, 2
                    s_and_b32 s52, s26, 3
                    s_add_u32 s55, s60, s52
                    s_mul_i32 s52, s55, {2*H_T}
                    s_lshl_b32 s53, s25, 11
                    s_add_u32 s52, s52, s53
                    s_add_u32 s52, s52, {H_OFF}""")
                if hd == 1 and i >= 2 and r == 11: tload(a, vq, i - 2)
                if r >= 3 and r & 1: a(f"v_cvt_pk_bf16_f32 v{P+(r-3)//2}, v{S+r-3}, v{S+r-2}")
                for _ in range(-(-len(fill) // (16 - r))):
                    if fill and r >= 4: a(fill.pop(0))
            a(f"v_cvt_pk_bf16_f32 v{P+7}, v{S+14}, v{S+15}")
            assert not fill
            if i == 0:
                for e in range(8):
                    a(f"v_cndmask_b32 v220, v{Z}, v{S+2*e}, s[{MSK[2*e]}:{MSK[2*e]+1}]\nv_cndmask_b32 v221, v{Z}, v{S+2*e+1}, s[{MSK[2*e+1]}:{MSK[2*e+1]+1}]\nv_cvt_pk_bf16_f32 v220, v220, v221\nv_xor_b32 v{136+e}, v{P+e}, v220\nv_mov_b32 v{P+e}, v220")
        a("s_waitcnt lgkmcnt(0)\ns_nop 0"); pv(VF + 8, PB + 8, False); pv(VF + 12, PB + 12, False)
        if hd == 0:
            qk(1, 7, 0); qk(1, 7, 1); qk(1, 8, 0); qk(1, 8, 1)
            for o in mx(1, 5): a(o)
            a("s_nop 1")
        stamp(a, 5 + hd, prof)
    wpre(99); tload(a, vq, 6); tload(a, vq, 7); a("s_nop 2")
    oepi(1)
    a(f"s_lshl_b32 s60, s60, 10\ns_add_u32 s60, s60, s69\ns_lshl_b32 s68, s66, 9\ns_add_u32 s60, s60, s68\ns_add_u32 s60, s60, 4096\ns_mov_b64 exec, s[58:59]\nbuffer_store_dwordx4 v[{QR}:{QR+3}], v242, s[20:23], s60 offen{SC}\ns_mov_b64 exec, -1"); vq.push("o")
def gemm2(a, vq, prof):
    vL = 224
    a(f"""v_lshrrev_b32 v{vL}, 4, v242
    s_lshr_b32 s61, s55, 1
    v_lshrrev_b32 v230, 2, v{vL}
    v_and_b32 v231, 3, v{vL}
    s_lshl_b32 s64, s55, 2
    s_add_u32 s64, s64, s25
    s_mul_i32 s64, s64, {16*1280}
    s_mul_i32 s65, s56, 160
    s_add_u32 s64, s64, s65
    v_mul_u32_u24 v232, 1280, v230
    v_lshl_add_u32 v232, v231, 4, v232
    v_cmp_gt_u32 s[58:59], 2, v231
    s_mov_b32 s8, s96
    s_mov_b32 s9, s97
    s_mov_b32 s10, {2048*1280}
    s_mov_b32 s11, 0x20000""")
    pollreg(a, 233, vL, "s61", 1, 16, 3)
    stamp(a, 7, prof)
    for it in range(19):
        nx = it + NT - 1
        if it == 2: a(f"s_waitcnt vmcnt({vq.wait('o')})\ns_barrier"); flag(a, vq, 3, 236)
        if it == OC - 1: poll_issue(a, vq, 240, 233, "po")
        if it == OC:
            poll_check(a, vq, 240, 233, 234, 3, "po"); a("s_barrier")
            for y in range(14, nx): tload(a, vq, y)
        if DIAG == 7 and it in (3, OC + 1, 14): stamp(a, {3: 0, OC + 1: 1, 14: 10}[it], prof)
        if nx < 14 or (it >= OC and nx < 19): tload(a, vq, nx)
        if 1 <= it <= 7:
            for o in wload(it + 11): a(o); vq.push(f"g{it+11}")
        if it == 8:
            for i in range(3):
                if i == 2: a("s_mov_b64 exec, s[58:59]")
                a(f"buffer_load_dwordx4 v[{244+4*i}:{247+4*i}], v232, s[4:7], s64 offen offset:{64*i}"); vq.push("xr")
            a("s_mov_b64 exec, -1")
        n = vq.wait(f"g{it}")
        if n is not None: a(f"s_waitcnt vmcnt({n})")
        b = 16 * (it % NT); w = wsl(it)
        for s4 in range(4):
            for s in range(5):
                A = AC + 20 * s4 + 4 * s
                a(f"v_mfma_f32_16x16x32_bf16 v[{A}:{A+3}], a[{w+4*s}:{w+3+4*s}], v[{b+4*s4}:{b+4*s4+3}], {'0' if it == 0 else f'v[{A}:{A+3}]'}")
    stamp(a, 8, prof)
    a(f"s_mul_i32 s66, s25, 23040\nv_lshrrev_b32 v233, 9, v242\nv_lshl_add_u32 v233, v233, 6, v242\nv_add_u32 v233, s66, v233\ns_mul_i32 s66, s25, 5760\nv_lshrrev_b32 v234, 1, v231\nv_mul_u32_u24 v234, 1152, v234\nv_and_b32 v235, 1, v231\nv_mul_u32_u24 v235, 576, v235\nv_add_u32 v234, v234, v235\nv_lshl_add_u32 v234, v230, 4, v234\nv_add_u32 v234, s66, v234\nv_add_u32 v235, 46080, v234")
    for i in range(20): a(f"ds_write_b128 v233, v[{AC+4*i}:{AC+4*i+3}] offset:{1152*i}")
    a("s_waitcnt lgkmcnt(0)\ns_barrier")
    for i in range(3):
        for w in range(4):
            for q in range(2):
                d = 32 * i + 8 * w + 4 * q
                a(f"ds_read_b128 v[{d}:{d+3}], v{234+(w>>1)} offset:{23040*(w&1) + 2304*i + 256*q}")
    for i in range(3):
        d = 32 * i
        for e in range(4): a(f"v_lshlrev_b32 v{96+2*e}, 16, v{244+4*i+e}\nv_and_b32 v{97+2*e}, 0xffff0000, v{244+4*i+e}")
        a(f"s_waitcnt lgkmcnt({min(15, 16-8*i)})")
        for e in range(0, 8, 2): a(f"v_pk_add_f32 v[{d+e}:{d+e+1}], v[{d+e}:{d+e+1}], v[{d+8+e}:{d+9+e}]\nv_pk_add_f32 v[{d+16+e}:{d+17+e}], v[{d+16+e}:{d+17+e}], v[{d+24+e}:{d+25+e}]")
        for e in range(0, 8, 2): a(f"v_pk_add_f32 v[{d+e}:{d+e+1}], v[{d+e}:{d+e+1}], v[{96+e}:{97+e}]")
        for e in range(0, 8, 2): a(f"v_pk_add_f32 v[{d+e}:{d+e+1}], v[{d+e}:{d+e+1}], v[{d+16+e}:{d+17+e}]")
        for e in range(4): a(f"v_cvt_pk_bf16_f32 v{d+16+e}, v{d+2*e}, v{d+2*e+1}")
        if i == 2: a("s_mov_b64 exec, s[58:59]")
        a(f"buffer_store_dwordx4 v[{d+16}:{d+19}], v232, s[8:11], s64 offen offset:{64*i}")
    a("s_mov_b64 exec, -1")
    stamp(a, 9, prof)
def kernel(name, prof):
    a = Asm()
    k1_setup(a)
    a(f"""s_load_dwordx2 s[84:85], s[0:1], 64
    s_load_dwordx2 s[96:97], s[0:1], 56
    s_memrealtime s[100:101]
    s_lshl_b32 s89, s27, 12
    s_lshl_b32 s81, s28, 2
    s_add_u32 s89, s89, s81
    s_add_u32 s89, s89, {FLAG_OFF}
    s_cmp_eq_u32 s25, 0
    s_mov_b32 s81, 0x7fe00000
    s_cselect_b32 s81, {FLAG_OFF}, s81
    s_cmp_ge_u32 s28, 14
    s_cbranch_scc1 K1_RP""")
    k1_gemm_setup(a)
    a("s_cmp_eq_u32 s28, 13\ns_cbranch_scc1 K1_SP")
    class H:
        start = staticmethod(nonce)
        def flag(a, vq): flag(a, vq, 1, 174)
        def pre(a, vq): a("v_lshrrev_b32 v100, 4, v170"); pollreg(a, 101, 100, "s27", 3, 14, 1); poll_issue(a, vq, 105, 101, "pp")
        def post(a, vq): poll_check(a, vq, 105, 101, 102, 1, "pp"); a("s_barrier"); return stage_issue(a, vq, 170)
        def w2a(a, vq):
            nonce_fin(a)
            a(f"s_lshl_b32 s60, s24, 12\ns_add_u32 s60, s60, s81\ns_add_u32 s60, s60, 0x40000\nv_and_b32 v190, 0x1ff, v170\nv_lshrrev_b32 v190, 2, v190\nv_add_u32 v190, s60, v190"); poll_issue(a, vq, 175, 190, "pw")
        def w2chk(a, vq): a("v_mov_b32 v174, 2"); poll_check(a, vq, 175, 190, 174, 1, "pw")
        def w2b(a, vq):
            a(f"s_lshr_b32 s56, s26, 2\ns_mul_i32 s57, s56, {W2_N}\ns_mul_i32 s67, s25, 5120\ns_add_u32 s57, s57, s67\ns_add_u32 s57, s57, {W2_OFF}")
            return [(o, "pf") for it in range(7) for o in wload(it, 170)]
    q1 = k1_main(a, False, prof, STS, H)
    a("s_branch K1_DONE\nK1_SP:")
    a(f"s_mov_b32 s31, {14*256}\ns_mov_b32 s32, {26*128}\ns_add_u32 s34, s52, {14*8192}\ns_add_u32 s35, s53, {26*4096}")
    q2 = k1_main(a, True, prof, STS, H)
    assert q1.q[q1.q.index('kv0'):] == q2.q[q2.q.index('kv0'):]
    a(f"s_branch K1_DONE\nK1_RP:\ns_waitcnt lgkmcnt(0)\ns_sub_u32 s82, s28, 14\ns_lshl_b32 s82, s82, 4\ns_add_u32 s82, s82, s27\ns_lshl_b32 s82, s82, 2\ns_add_u32 s82, s82, {FLAG_OFF + 0x40000}")
    nonce(a)
    for o in wpf(): a(o)
    k1_repack(a, SC)
    vq = VQ(); nonce_fin(a)
    a("s_waitcnt vmcnt(0)\ns_barrier"); flag(a, vq, 1, 190, True)
    H.w2a(a, vq); H.w2chk(a, vq); a("s_barrier")
    for o, _ in H.w2b(a, vq): a(o)
    a("s_waitcnt vmcnt(0)"); vq = VQ()
    H.pre(a, vq)
    for o, _ in H.post(a, vq): a(o)
    a("s_waitcnt vmcnt(0)\nK1_DONE:\nv_lshrrev_b32 v160, 4, v170")
    attention(a, q1, prof, 160)
    gemm2(a, q1, prof)
    if prof: a("s_memrealtime s[90:91]\ns_waitcnt lgkmcnt(0)\ns_sub_u32 s81, s90, s100\ns_mov_b32 s82, s100"); prof_out(a, 13)
    a("K1_END:\ns_endpgm")
    return kernel_head(name) + a.text(), kernel_desc(name, 512, 256)
```
